```python
import torch

def _softmax(x, axis=-1):
    return torch.softmax(x, dim=axis)
def _gelu(x):
    return torch.nn.functional.gelu(x, approximate="tanh")
def _silu(x):
    return torch.nn.functional.silu(x)
def _sigmoid(x):
    return torch.sigmoid(x)
def _layernorm(x, axis=-1, eps=1e-5):
    m = x.mean(dim=axis, keepdim=True)
    v = x.var(dim=axis, keepdim=True, unbiased=False)
    return (x - m) / torch.sqrt(v + eps)
def _scatter_add(tgt, idx, src, axis=0):
    return tgt.clone().index_add_(axis, idx, src)
def _segment_sum(src, seg, n):
    out = torch.zeros((n,) + src.shape[1:], dtype=src.dtype)
    return out.index_add_(0, seg, src)
def _pad(x, pw):
    flat = tuple(v for pair in reversed(pw) for v in pair)
    return torch.nn.functional.pad(x, flat)

kernel_name = 'standalone__gqa_block_cached__near_ridge'

def setup_inputs():

    _w = (lambda a: (lambda t: t.to(torch.bfloat16) if t.is_floating_point() else t)(torch.as_tensor(a)))
    B, Sq, D = 8, 112, 448
    Hq, Hkv, Sk, Dh = 16, 8, 1024, 256
    assert Hq % Hkv == 0, (Hq, Hkv)
    return {
        "x": _w((lambda *s: torch.randn(*s, dtype=torch.bfloat16) * 0.8)(B, Sq, D)),
        "k_cache": _w((lambda *s: torch.randn(*s, dtype=torch.bfloat16) * 0.8)(B, Hkv, Sk, Dh)),
        "v_cache": _w((lambda *s: torch.randn(*s, dtype=torch.bfloat16) * 0.05)(B, Hkv, Sk, Dh)),
        "wq": _w((lambda *s: torch.randn(*s, dtype=torch.bfloat16) * 0.8)(D, Hq * Dh) * (D ** -0.5)),
        "wo": _w((lambda *s: torch.randn(*s, dtype=torch.bfloat16) * 0.05)(Hq * Dh, D) * ((Hq * Dh) ** -0.5)),
    }

def reference(x, k_cache, v_cache, wq, wo):
    B, Sq, D = x.shape
    Hq, Dh = 16, 256
    Hkv = k_cache.shape[1]
    rep = Hq // Hkv
    q = (lambda x, *d: x.permute(*d))((x @ wq).reshape(B, Sq, Hq, Dh), 0, 2, 1, 3)
    k = (lambda x, n, axis: torch.repeat_interleave(x, n, dim=axis))(k_cache, rep, axis=1)
    v = (lambda x, n, axis: torch.repeat_interleave(x, n, dim=axis))(v_cache, rep, axis=1)
    scores = torch.einsum("bhqd,bhkd->bhqk", q, k) * (Dh ** -0.5)
    p = _softmax(scores, axis=-1)
    o = torch.einsum("bhqk,bhkd->bhqd", p, v)
    return (lambda x, *d: x.permute(*d))(o, 0, 2, 1, 3).reshape(B, Sq, Hq * Dh) @ wo
```

```python
import struct, sys

def f32hex(x):
    return "0x%08x" % struct.unpack("<I", struct.pack("<f", x))[0]

class Asm:
    def __init__(self):
        self.lines = []
    def __call__(self, s):
        self.lines.append("    " + s)
    def label(self, s):
        self.lines.append(s + ":")
    def raw(self, s):
        self.lines.append(s)
    def nop(self, n):
        while n > 0:
            k = min(n, 16)
            self(f"s_nop {k-1}")
            n -= k
    def text(self):
        return "\n".join(self.lines) + "\n"

B, SQ, D = 8, 112, 448
HQ, HKV, SK, DH = 16, 8, 1024, 256
X_BYTES = B*SQ*D*2
WQ_BYTES = D*HQ*DH*2
WO_BYTES = HQ*DH*D*2
O_BYTES = B*SQ*HQ*DH*2
OUT_BYTES = B*SQ*D*2
CSCALE = 1.4426950408889634/16.0

def gen_attn(A, dbgQ=False):
    A.raw(".globl attn_kernel")
    A.raw(".p2align 8")
    A.raw(".type attn_kernel,@function")
    A.label("attn_kernel")
    A("s_cmp_ge_u32 s2, 256")
    A("s_cbranch_scc1 LA_end")
    A("s_load_dwordx16 s[4:19], s[0:1], 0")
    A("v_lshrrev_b32 v1, 6, v0")
    A("s_nop 0")
    A("v_readfirstlane_b32 s40, v1")
    A("s_and_b32 s44, s2, 7")
    A("s_lshr_b32 s45, s2, 3")
    A("s_lshr_b32 s46, s45, 2")
    A("s_and_b32 s47, s45, 3")
    A("s_and_b32 s41, s40, 1")
    A("s_lshr_b32 s42, s40, 1")
    A("s_lshl_b32 s48, s44, 1")
    A("s_lshr_b32 s49, s47, 1")
    A("s_add_u32 s48, s48, s49")
    A("s_and_b32 s49, s47, 1")
    A("s_mul_i32 s49, s49, 56")
    A("s_mul_i32 s50, s46, 112")
    A("s_add_u32 s50, s50, s49")
    A("s_lshl_b32 s51, s46, 3")
    A("s_add_u32 s51, s51, s44")
    A("s_waitcnt lgkmcnt(0)")
    A("s_mov_b32 s20, s4"); A("s_mov_b32 s21, s5"); A(f"s_mov_b32 s22, {X_BYTES}"); A("s_mov_b32 s23, 0x00020000")
    A("s_lshl_b32 s52, s51, 19")
    A("s_add_u32 s24, s6, s52"); A("s_addc_u32 s25, s7, 0"); A("s_mov_b32 s26, 524288"); A("s_mov_b32 s27, 0x00020000")
    A("s_add_u32 s28, s8, s52"); A("s_addc_u32 s29, s9, 0"); A("s_mov_b32 s30, 524288"); A("s_mov_b32 s31, 0x00020000")
    A("s_mov_b32 s32, s10"); A("s_mov_b32 s33, s11"); A(f"s_mov_b32 s34, {WQ_BYTES}"); A("s_mov_b32 s35, 0x00020000")
    A("s_mov_b32 s36, s18"); A("s_mov_b32 s37, s19"); A(f"s_mov_b32 s38, {O_BYTES}"); A("s_mov_b32 s39, 0x00020000")
    A("v_and_b32 v1, 63, v0")
    A("v_and_b32 v2, 31, v1")
    A("v_lshrrev_b32 v3, 5, v1")
    A("v_bfe_u32 v4, v1, 4, 1")
    A("v_bfe_u32 v5, v1, 2, 2")
    A("v_and_b32 v6, 3, v1")
    A("s_lshl_b32 s52, s41, 5")
    A("s_add_u32 s52, s52, s50")
    A("v_add_u32 v7, s52, v2")
    A("v_mul_u32_u24 v8, 896, v7")
    A("v_lshl_add_u32 v8, v3, 4, v8")
    for ks in range(28):
        A(f"buffer_load_dwordx4 v[{128+4*ks}:{131+4*ks}], v8, s[20:23], 0 offen offset:{ks*32}")
    for par in range(2):
        A(f"v_lshlrev_b32 v9, 2, v3")
        A(f"v_add_u32 v9, {8*par}, v9")
        A(f"v_xor_b32 v9, v9, v2")
        A(f"v_lshlrev_b32 v9, 4, v9")
        A(f"v_lshl_add_u32 v9, v3, 13, v9")
        A(f"s_lshl_b32 s52, s48, 9")
        A(f"v_add_u32 v{10+par}, s52, v9")
    A("v_lshlrev_b32 v9, 3, v3")
    A("v_add_u32 v9, v9, v5")
    A("v_lshlrev_b32 v9, 9, v9")
    A("s_lshl_b32 s52, s42, 8")
    A("v_add_u32 v9, s52, v9")
    A("v_lshrrev_b32 v16, 1, v6")
    A("v_lshl_add_u32 v16, v4, 1, v16")
    A("v_lshl_add_u32 v9, v16, 4, v9")
    A("v_and_b32 v16, 1, v6")
    A("v_lshl_add_u32 v9, v16, 3, v9")
    for T in range(4):
        A(f"v_xor_b32 v16, {T}, v5")
        A(f"v_lshl_add_u32 v{12+T}, v16, 6, v9")
    for i in range(64):
        A(f"v_mov_b32 v{56+i}, 0")
    def wq_round(k0, nrows):
        n_inst = nrows//2
        per_wave = n_inst//4
        A(f"s_mul_i32 s52, s40, {per_wave*2}")
        for q in range(per_wave):
            A(f"s_add_u32 s53, s52, {2*q}")
            A(f"s_lshl_b32 m0, s53, 9")
            A(f"s_add_u32 s53, s53, {k0}")
            A(f"s_lshl_b32 s53, s53, 13")
            A(f"buffer_load_dwordx4 v{10+(q&1)}, s[32:35], s53 offen lds")
        A("s_waitcnt vmcnt(0)")
        A("s_barrier")
        nks = nrows//16
        for ksl in range(nks):
            ks = k0//16 + ksl
            off = ksl*8192
            for T in range(4):
                base = f"v{12+T}"
                if off + 2048 > 65535:
                    A(f"v_add_u32 v16, 65536, v{12+T}")
                    base = "v16"; o = off - 65536
                else:
                    o = off
                A(f"ds_read_b64_tr_b16 a[{64+4*T}:{65+4*T}], {base} offset:{o}")
                A(f"ds_read_b64_tr_b16 a[{66+4*T}:{67+4*T}], {base} offset:{o+2048}")
            A("s_waitcnt lgkmcnt(0)")
            for T in range(4):
                A(f"v_mfma_f32_32x32x16_bf16 v[{56+16*T}:{71+16*T}], a[{64+4*T}:{67+4*T}], v[{128+4*ks}:{131+4*ks}], v[{56+16*T}:{71+16*T}]")
        A("s_barrier")
    A("s_waitcnt vmcnt(0)")
    wq_round(0, 256)
    wq_round(256, 192)
    A.nop(16)
    A("v_lshlrev_b32 v16, 4, v1")
    A("s_lshl_b32 s52, s40, 13")
    A("s_add_u32 s52, s52, 131072")
    A("v_add_u32 v16, s52, v16")
    for T in range(4):
        for u in range(2):
            b0 = 56 + 16*T + 8*u
            A(f"v_cvt_pk_bf16_f32 v120, v{b0}, v{b0+1}")
            A(f"v_cvt_pk_bf16_f32 v121, v{b0+2}, v{b0+3}")
            A(f"v_cvt_pk_bf16_f32 v122, v{b0+4}, v{b0+5}")
            A(f"v_cvt_pk_bf16_f32 v123, v{b0+6}, v{b0+7}")
            A("s_nop 1")
            A("v_permlane32_swap_b32 v120, v122")
            A("v_permlane32_swap_b32 v121, v123")
            A("s_nop 1")
            A(f"ds_write_b128 v16, v[120:123] offset:{(2*T+u)*1024}")
    A("s_waitcnt lgkmcnt(0)")
    A("s_barrier")
    A("v_lshlrev_b32 v16, 4, v1")
    A("s_lshl_b32 s52, s41, 13")
    A("s_add_u32 s52, s52, 131072")
    A("v_add_u32 v16, s52, v16")
    for kk in range(16):
        A(f"ds_read_b128 a[{4*kk}:{4*kk+3}], v16 offset:{(kk>>3)*16384 + (kk&7)*1024}")
    A("s_waitcnt lgkmcnt(0)")
    if dbgQ:
        pass
    A("s_lshl_b32 s52, s42, 15")
    A("v_lshlrev_b32 v9, 9, v2")
    A("v_add_u32 v9, s52, v9")
    A("v_and_b32 v24, 15, v2")
    for k0 in range(8):
        A(f"v_add_u32 v25, {2*k0}, v3")
        A(f"v_xor_b32 v25, v25, v24")
        A(f"v_lshl_add_u32 v{16+k0}, v25, 4, v9")
    A("v_lshlrev_b32 v9, 2, v3")
    A("v_add_u32 v9, v9, v5")
    A("v_lshlrev_b32 v9, 9, v9")
    A("s_add_u32 s52, s52, 16384")
    A("v_add_u32 v9, s52, v9")
    A("v_lshrrev_b32 v38, 1, v6")
    A("v_lshl_add_u32 v38, v4, 1, v38")
    A("v_lshl_add_u32 v9, v38, 4, v9")
    A("v_and_b32 v38, 1, v6")
    A("v_lshl_add_u32 v9, v38, 3, v9")
    for T0 in range(4):
        A(f"v_xor_b32 v38, {T0}, v5")
        A(f"v_lshl_add_u32 v{24+T0}, v38, 6, v9")
    A("s_lshl_b32 s52, s41, 13")
    for q in range(8):
        A(f"v_add_u32 v9, {2*q}, v3")
        A(f"v_xor_b32 v38, v9, v2")
        A(f"v_lshlrev_b32 v38, 4, v38")
        A(f"v_lshl_add_u32 v38, v9, 9, v38")
        A(f"v_add_u32 v{28+q}, s52, v38")
    for par in range(2):
        A(f"v_lshlrev_b32 v9, 2, v3")
        A(f"v_add_u32 v9, {8*par}, v9")
        A(f"v_xor_b32 v9, v9, v2")
        A(f"v_lshlrev_b32 v9, 4, v9")
        A(f"v_lshl_add_u32 v9, v3, 9, v9")
        A(f"v_add_u32 v{36+par}, s52, v9")
    A("v_mov_b32 v40, 0xff800000")
    A("v_mov_b32 v41, 0")
    for i in range(128):
        A(f"v_mov_b32 v{128+i}, 0")
    A(f"s_mov_b32 s55, {f32hex(CSCALE)}")
    A("s_lshl_b32 s56, s42, 15")
    A("s_lshl_b32 s52, s41, 13")
    A("s_add_u32 s56, s56, s52")
    A("s_lshl_b32 s57, s42, 18")
    def dma_tile():
        for q in range(8):
            A(f"s_add_u32 m0, s56, {q*1024}")
            A("s_nop 0")
            A(f"buffer_load_dwordx4 v{28+q}, s[24:27], s57 offen lds")
        for q in range(8):
            A(f"s_add_u32 m0, s56, {16384 + q*1024}")
            A(f"s_add_u32 s58, s57, {q*1024}")
            A(f"buffer_load_dwordx4 v{36+(q&1)}, s[28:31], s58 offen lds")
    dma_tile()
    A("s_mov_b32 s43, 0")
    A.label("LA_loop")
    A("s_waitcnt vmcnt(0)")
    A("s_barrier")
    A("s_add_u32 s57, s57, 16384")
    A("s_xor_b32 s56, s56, 65536")
    A("s_cmp_ge_u32 s43, 15")
    A("s_cbranch_scc1 LA_noload")
    dma_tile()
    A.label("LA_noload")
    for kk in range(16):
        A(f"ds_read_b128 a[{64+4*kk}:{67+4*kk}], v{16+(kk&7)} offset:{(kk>>3)*256}")
    for kk in range(16):
        A(f"s_waitcnt lgkmcnt({15-kk})")
        c = "0" if kk == 0 else "v[96:111]"
        A(f"v_mfma_f32_32x32x16_bf16 v[96:111], a[{64+4*kk}:{67+4*kk}], a[{4*kk}:{4*kk+3}], {c}")
    for T in range(8):
        for sh in range(2):
            A(f"ds_read_b64_tr_b16 a[{128+4*T+2*sh}:{129+4*T+2*sh}], v{24+(T&3)} offset:{sh*4096 + (T>>2)*256}")
    A.nop(14)
    A("v_max3_f32 v42, v96, v97, v98")
    for i in range(3, 15, 2):
        A(f"v_max3_f32 v42, v42, v{96+i}, v{97+i}")
    A("v_max_f32 v42, v42, v111")
    A("v_mov_b32 v43, v42")
    A("s_nop 1")
    A("v_permlane32_swap_b32 v42, v43")
    A("v_max_f32 v42, v42, v43")
    A("v_mul_f32 v42, s55, v42")
    A("v_max_f32 v42, v40, v42")
    A("v_sub_f32 v43, v40, v42")
    A("v_exp_f32 v43, v43")
    A("v_mov_b32 v40, v42")
    for i in range(16):
        A(f"v_fma_f32 v{96+i}, v{96+i}, s55, -v42")
    for i in range(16):
        A(f"v_exp_f32 v{96+i}, v{96+i}")
    A("v_mul_f32 v41, v41, v43")
    for i in range(16):
        A(f"v_add_f32 v41, v41, v{96+i}")
    for i in range(8):
        A(f"v_cvt_pk_bf16_f32 v{112+i}, v{96+2*i}, v{97+2*i}")
    for i in range(128):
        A(f"v_mul_f32 v{128+i}, v{128+i}, v43")
    A("s_nop 1")
    for T in range(8):
        A(f"s_waitcnt lgkmcnt({14-2*T})")
        A(f"v_mfma_f32_32x32x16_bf16 v[{128+16*T}:{143+16*T}], a[{128+4*T}:{131+4*T}], v[112:115], v[{128+16*T}:{143+16*T}]")
    for T in range(8):
        for sh in range(2):
            A(f"ds_read_b64_tr_b16 a[{160+4*T+2*sh}:{161+4*T+2*sh}], v{24+(T&3)} offset:{8192 + sh*4096 + (T>>2)*256}")
    for T in range(8):
        A(f"s_waitcnt lgkmcnt({14-2*T})")
        A(f"v_mfma_f32_32x32x16_bf16 v[{128+16*T}:{143+16*T}], a[{160+4*T}:{163+4*T}], v[116:119], v[{128+16*T}:{143+16*T}]")
    for i in range(12):
        A(f"v_xor_b32 v{16+i}, 0x10000, v{16+i}")
    A("s_add_u32 s43, s43, 1")
    A("s_cmp_lt_u32 s43, 16")
    A("s_cbranch_scc1 LA_loop")
    A.nop(16)
    A("s_barrier")
    A("v_mov_b32 v43, v41")
    A("s_nop 1")
    A("v_permlane32_swap_b32 v41, v43")
    A("v_add_f32 v41, v41, v43")
    A("v_lshlrev_b32 v16, 4, v1")
    A("s_mul_i32 s52, s40, 16896")
    A("v_add_u32 v16, s52, v16")
    A("v_lshlrev_b32 v17, 3, v1")
    A("v_add_u32 v17, s52, v17")
    A("s_cmp_eq_u32 s42, 0")
    A("s_cbranch_scc0 LA_ep1")
    def epi(kv):
        oth = 128 + 64*(1-kv)
        own = 128 + 64*kv
        for j in range(16):
            A(f"ds_write_b128 v16, v[{oth+4*j}:{oth+4*j+3}] offset:{j*1024}")
        A("ds_write_b64 v17, v[40:41] offset:16384")
        A("s_waitcnt lgkmcnt(0)")
        A("s_barrier")
        A("s_xor_b32 s53, s40, 2")
        A("s_mul_i32 s53, s53, 16896")
        A("v_lshlrev_b32 v18, 4, v1")
        A("v_add_u32 v18, s53, v18")
        A("v_lshlrev_b32 v19, 3, v1")
        A("v_add_u32 v19, s53, v19")
        A("ds_read_b64 v[44:45], v19 offset:16384")
        for j in range(16):
            A(f"ds_read_b128 v[{oth+4*j}:{oth+4*j+3}], v18 offset:{j*1024}")
        A("s_waitcnt lgkmcnt(0)")
        A("v_max_f32 v42, v40, v44")
        A("v_sub_f32 v43, v40, v42")
        A("v_exp_f32 v43, v43")
        A("v_sub_f32 v46, v44, v42")
        A("v_exp_f32 v46, v46")
        A("v_mul_f32 v41, v41, v43")
        A("v_fma_f32 v41, v45, v46, v41")
        A("v_rcp_f32 v41, v41")
        A("s_nop 0")
        A("v_mul_f32 v43, v43, v41")
        A("v_mul_f32 v46, v46, v41")
        for i in range(64):
            A(f"v_mul_f32 v{own+i}, v{own+i}, v43")
            A(f"v_fma_f32 v{own+i}, v{oth+i}, v46, v{own+i}")
        A("v_lshlrev_b32 v16, 13, v7")
        A("s_lshl_b32 s53, s48, 9")
        A("v_add_u32 v16, s53, v16")
        A("v_lshl_add_u32 v16, v3, 4, v16")
        A("s_lshl_b32 s53, s41, 5")
        A("v_add_u32 v17, s53, v2")
        A("v_cmp_gt_u32 vcc, 56, v17")
        A("v_mov_b32 v17, 0x7fff0000")
        A("s_nop 1")
        A("v_cndmask_b32 v16, v17, v16, vcc")
        for T in range(4):
            for u in range(2):
                b0 = own + 16*T + 8*u
                A(f"v_cvt_pk_bf16_f32 v120, v{b0}, v{b0+1}")
                A(f"v_cvt_pk_bf16_f32 v121, v{b0+2}, v{b0+3}")
                A(f"v_cvt_pk_bf16_f32 v122, v{b0+4}, v{b0+5}")
                A(f"v_cvt_pk_bf16_f32 v123, v{b0+6}, v{b0+7}")
                A("s_nop 1")
                A("v_permlane32_swap_b32 v120, v122")
                A("v_permlane32_swap_b32 v121, v123")
                A("s_nop 1")
                A(f"buffer_store_dwordx4 v[120:123], v16, s[36:39], 0 offen offset:{(4*kv+T)*64 + u*32}")
                A("s_nop 1")
    epi(0)
    A("s_branch LA_end")
    A.label("LA_ep1")
    epi(1)
    A.label("LA_end")
    A("s_endpgm")

def gen_file():
    A = Asm()
    A.raw("; @launch kernel=attn_kernel grid=(256,1,1) block=(256,1,1) lds=163840")
    A.raw('.amdgcn_target "amdgcn-amd-amdhsa--gfx950"')
    A.raw(".text")
    gen_attn(A)
    A.raw('.section .rodata,"a"')
    A.raw(".p2align 6")
    A.raw(".amdhsa_kernel attn_kernel")
    A.raw("  .amdhsa_next_free_vgpr 448")
    A.raw("  .amdhsa_next_free_sgpr 102")
    A.raw("  .amdhsa_accum_offset 256")
    A.raw("  .amdhsa_group_segment_fixed_size 0")
    A.raw("  .amdhsa_kernarg_size 64")
    A.raw("  .amdhsa_user_sgpr_count 2")
    A.raw("  .amdhsa_user_sgpr_kernarg_segment_ptr 1")
    A.raw("  .amdhsa_system_sgpr_workgroup_id_x 1")
    A.raw(".end_amdhsa_kernel")
    return A.text()

if __name__ == "__main__":
    open(sys.argv[1], "w").write(gen_file())
```

```python
from gen import *

def gen_oproj(A):
    A.raw(".globl oproj_kernel")
    A.raw(".p2align 8")
    A.raw(".type oproj_kernel,@function")
    A.label("oproj_kernel")
    A("s_cmp_ge_u32 s2, 196")
    A("s_cbranch_scc1 LB_end")
    A("s_load_dwordx16 s[4:19], s[0:1], 0")
    A("v_lshrrev_b32 v1, 6, v0")
    A("s_nop 0")
    A("v_readfirstlane_b32 s40, v1")
    A("s_mov_b32 s41, 0x24924925")
    A("s_mul_hi_u32 s42, s2, s41")
    A("s_mul_i32 s43, s42, 7")
    A("s_sub_u32 s43, s2, s43")
    A("s_waitcnt lgkmcnt(0)")
    A("s_mov_b32 s20, s18"); A("s_mov_b32 s21, s19"); A(f"s_mov_b32 s22, {O_BYTES}"); A("s_mov_b32 s23, 0x00020000")
    A("s_mov_b32 s24, s12"); A("s_mov_b32 s25, s13"); A(f"s_mov_b32 s26, {WO_BYTES}"); A("s_mov_b32 s27, 0x00020000")
    A("s_mov_b32 s28, s14"); A("s_mov_b32 s29, s15"); A(f"s_mov_b32 s30, {OUT_BYTES}"); A("s_mov_b32 s31, 0x00020000")
    A("v_and_b32 v1, 63, v0")
    A("v_and_b32 v2, 31, v1")
    A("v_lshrrev_b32 v3, 5, v1")
    A("v_bfe_u32 v4, v1, 4, 1")
    A("v_bfe_u32 v5, v1, 2, 2")
    A("v_and_b32 v6, 3, v1")
    A("s_lshl_b32 s44, s42, 5")
    A("v_add_u32 v7, s44, v2")
    A("v_lshlrev_b32 v8, 13, v7")
    A("v_lshl_add_u32 v8, v3, 4, v8")
    A("s_lshl_b32 s44, s40, 11")
    A("v_add_u32 v8, s44, v8")
    A("v_lshrrev_b32 v10, 3, v1")
    A("v_mul_u32_u24 v9, 896, v10")
    A("v_and_b32 v10, 7, v1")
    A("v_lshlrev_b32 v11, 2, v4")
    A("v_xor_b32 v10, v10, v11")
    A("v_lshl_add_u32 v9, v10, 4, v9")
    A("s_lshl_b32 s44, s43, 7")
    A("v_add_u32 v9, s44, v9")
    A("v_lshlrev_b32 v10, 3, v3")
    A("v_add_u32 v10, v10, v5")
    A("v_lshlrev_b32 v10, 7, v10")
    A("s_lshl_b32 s44, s40, 15")
    A("v_add_u32 v10, s44, v10")
    A("v_lshrrev_b32 v11, 1, v6")
    A("v_lshl_add_u32 v11, v4, 1, v11")
    A("v_lshl_add_u32 v10, v11, 4, v10")
    A("v_and_b32 v11, 1, v6")
    A("v_lshl_add_u32 v10, v11, 3, v10")
    A("v_lshrrev_b32 v11, 1, v5")
    for nti in range(2):
        A(f"v_xor_b32 v14, {nti}, v11")
        A(f"v_lshl_add_u32 v{12+nti}, v14, 6, v10")
    for i in range(32):
        A(f"v_mov_b32 v{64+i}, 0")
    A("s_mul_i32 s45, s40, 917504")
    A("s_lshl_b32 s46, s40, 15")
    def issue(chunk):
        slot = chunk & 3
        for q in range(8):
            A(f"s_add_u32 m0, s46, {slot*8192 + q*1024}")
            A(f"s_add_u32 s47, s45, {(chunk*64 + q*8)*896}")
            A(f"buffer_load_dwordx4 v9, s[24:27], s47 offen lds")
        for ksl in range(4):
            A(f"buffer_load_dwordx4 v[{128+16*slot+4*ksl}:{131+16*slot+4*ksl}], v8, s[20:23], 0 offen offset:{chunk*128 + ksl*32}")
    for c in range(3):
        issue(c)
    for c in range(16):
        if c + 3 < 16:
            issue(c+3)
            A("s_waitcnt vmcnt(36)")
        else:
            A(f"s_waitcnt vmcnt({12*(15-c)})")
        slot = c & 3
        for ksl in range(4):
            for nti in range(2):
                for sh in range(2):
                    A(f"ds_read_b64_tr_b16 a[{8*ksl+4*nti+2*sh}:{8*ksl+4*nti+2*sh+1}], v{12+nti} offset:{slot*8192 + ksl*2048 + sh*512}")
        for ksl in range(4):
            A(f"s_waitcnt lgkmcnt({12-4*ksl})")
            for nti in range(2):
                A(f"v_mfma_f32_32x32x16_bf16 v[{64+16*nti}:{79+16*nti}], a[{8*ksl+4*nti}:{8*ksl+4*nti+3}], v[{128+16*slot+4*ksl}:{131+16*slot+4*ksl}], v[{64+16*nti}:{79+16*nti}]")
    A.nop(16)
    A("v_lshlrev_b32 v16, 4, v1")
    A("v_add_u32 v17, s46, v16")
    for j in range(8):
        A(f"ds_write_b128 v17, v[{64+4*j}:{67+4*j}] offset:{j*1024}")
    A("s_waitcnt lgkmcnt(0)")
    A("s_barrier")
    A("s_cmp_lg_u32 s40, 0")
    A("s_cbranch_scc1 LB_end")
    for w in range(1, 4):
        A(f"v_add_u32 v18, {w*32768}, v16")
        for j in range(8):
            A(f"ds_read_b128 v[{128+4*j}:{131+4*j}], v18 offset:{j*1024}")
        A("s_waitcnt lgkmcnt(0)")
        for i in range(32):
            A(f"v_add_f32 v{64+i}, v{64+i}, v{128+i}")
    A("v_mul_u32_u24 v16, 896, v7")
    A("s_lshl_b32 s44, s43, 7")
    A("v_add_u32 v16, s44, v16")
    A("v_lshl_add_u32 v16, v3, 4, v16")
    for nti in range(2):
        for u in range(2):
            b0 = 64 + 16*nti + 8*u
            A(f"v_cvt_pk_bf16_f32 v120, v{b0}, v{b0+1}")
            A(f"v_cvt_pk_bf16_f32 v121, v{b0+2}, v{b0+3}")
            A(f"v_cvt_pk_bf16_f32 v122, v{b0+4}, v{b0+5}")
            A(f"v_cvt_pk_bf16_f32 v123, v{b0+6}, v{b0+7}")
            A("s_nop 1")
            A("v_permlane32_swap_b32 v120, v122")
            A("v_permlane32_swap_b32 v121, v123")
            A("s_nop 1")
            A(f"buffer_store_dwordx4 v[120:123], v16, s[28:31], 0 offen offset:{nti*64 + u*32}")
            A("s_nop 1")
    A.label("LB_end")
    A("s_endpgm")

def kd(A, name, vgpr, accum):
    A.raw(f".amdhsa_kernel {name}")
    A.raw(f"  .amdhsa_next_free_vgpr {vgpr}")
    A.raw("  .amdhsa_next_free_sgpr 102")
    A.raw(f"  .amdhsa_accum_offset {accum}")
    A.raw("  .amdhsa_group_segment_fixed_size 0")
    A.raw("  .amdhsa_kernarg_size 64")
    A.raw("  .amdhsa_user_sgpr_count 2")
    A.raw("  .amdhsa_user_sgpr_kernarg_segment_ptr 1")
    A.raw("  .amdhsa_system_sgpr_workgroup_id_x 1")
    A.raw(".end_amdhsa_kernel")

def gen_file2():
    A = Asm()
    A.raw("; @launch kernel=attn_kernel grid=(256,1,1) block=(256,1,1) lds=163840")
    A.raw("; @launch kernel=oproj_kernel grid=(196,1,1) block=(256,1,1) lds=131072")
    A.raw('.amdgcn_target "amdgcn-amd-amdhsa--gfx950"')
    A.raw(".text")
    gen_attn(A)
    gen_oproj(A)
    A.raw('.section .rodata,"a"')
    A.raw(".p2align 6")
    kd(A, "attn_kernel", 448, 256)
    A.raw(".p2align 6")
    kd(A, "oproj_kernel", 288, 256)
    return A.text()

if __name__ == "__main__":
    open(sys.argv[1], "w").write(gen_file2())
```

```python
import struct, sys

def f32hex(x):
    return "0x%08x" % struct.unpack("<I", struct.pack("<f", x))[0]

class Asm:
    def __init__(self):
        self.lines = []
        self.vmq = []
        self.lgq = []
    def __call__(self, s):
        self.lines.append("    " + s)
    def label(self, s):
        self.lines.append(s + ":")
    def raw(self, s):
        self.lines.append(s)
    def nop(self, n):
        while n > 0:
            k = min(n, 16)
            self(f"s_nop {k-1}")
            n -= k
    def vm(self, s, tag):
        self(s); self.vmq.append(tag)
    def lg(self, s, tag):
        self(s); self.lgq.append(tag)
    def wait_vm(self, tag):
        idxs = [i for i, t in enumerate(self.vmq) if t == tag]
        if not idxs: return
        idx = max(idxs)
        n = len(self.vmq) - 1 - idx
        self(f"s_waitcnt vmcnt({min(n,63)})")
        self.vmq = self.vmq[idx+1:]
    def wait_lg(self, tag):
        idxs = [i for i, t in enumerate(self.lgq) if t == tag]
        if not idxs: return
        idx = max(idxs)
        n = len(self.lgq) - 1 - idx
        self(f"s_waitcnt lgkmcnt({min(n,15)})")
        self.lgq = self.lgq[idx+1:]
    def wait_all(self):
        self("s_waitcnt vmcnt(0) lgkmcnt(0)"); self.vmq = []; self.lgq = []
    def text(self):
        return "\n".join(self.lines) + "\n"

STAMP = False
import os
EXP = os.environ.get('EXP','')
stamp_idx = [0]
def stamp(A):
    if not STAMP: return
    i = stamp_idx[0]; stamp_idx[0] += 1
    A("s_memtime s[96:97]")
    A("s_waitcnt lgkmcnt(0)")
    A("v_mov_b32 v46, s96")
    A("v_mov_b32 v47, 0")
    A(f"buffer_store_dword v46, v47, s[92:95], 0 offen offset:{4*i}")

def lstamp(A, k):
    A("s_memtime s[96:97]")
    A("s_waitcnt lgkmcnt(0)")
    A("v_mov_b32 v46, s96")
    A("s_lshr_b32 s98, s43, 1")
    A("s_mul_i32 s98, s98, 12")
    A(f"s_add_u32 s98, s98, {64+4*k}")
    A("v_mov_b32 v47, s98")
    A(f"buffer_store_dword v46, v47, s[92:95], 0 offen")
B, SQ, D = 8, 112, 448
HQ, HKV, SK, DH = 16, 8, 1024, 256
X_BYTES = B*SQ*D*2
WQ_BYTES = D*HQ*DH*2
WO_BYTES = HQ*DH*D*2
O_BYTES = B*SQ*HQ*DH*2
OUT_BYTES = B*SQ*D*2
CSCALE = 1.4426950408889634/16.0
SA, SB, PK, OA = 96, 112, 48, 128
QF, KF, VF = 0, 64, 128

def interleave(mfmas, fillers):
    out = []
    n = len(mfmas); m = len(fillers)
    k = 0
    for i, mf in enumerate(mfmas):
        out.append(mf)
        tgt = (i+1)*m//n
        while k < tgt:
            out.append(fillers[k]); k += 1
    return out

def gen_attn(A):
    A.raw(".globl attn_kernel")
    A.raw(".p2align 8")
    A.raw(".type attn_kernel,@function")
    A.label("attn_kernel")
    A("s_cmp_ge_u32 s2, 256")
    A("s_cbranch_scc1 LA_end")
    A("s_load_dwordx16 s[4:19], s[0:1], 0")
    A("v_lshrrev_b32 v1, 6, v0")
    A("s_nop 0")
    A("v_readfirstlane_b32 s40, v1")
    A("s_and_b32 s46, s2, 7")
    A("s_lshr_b32 s45, s2, 3")
    A("s_lshr_b32 s44, s45, 2")
    A("s_and_b32 s47, s45, 3")
    A("s_and_b32 s41, s40, 1")
    A("s_lshr_b32 s42, s40, 1")
    A("s_lshl_b32 s48, s44, 1")
    A("s_lshr_b32 s49, s47, 1")
    A("s_add_u32 s48, s48, s49")
    A("s_and_b32 s49, s47, 1")
    A("s_mul_i32 s49, s49, 56")
    A("s_mul_i32 s50, s46, 112")
    A("s_add_u32 s50, s50, s49")
    A("s_lshl_b32 s51, s46, 3")
    A("s_add_u32 s51, s51, s44")
    A("s_waitcnt lgkmcnt(0)")
    A("s_mov_b32 s20, s4"); A("s_mov_b32 s21, s5"); A(f"s_mov_b32 s22, {X_BYTES}"); A("s_mov_b32 s23, 0x00020000")
    A("s_lshl_b32 s52, s51, 19")
    A("s_add_u32 s24, s6, s52"); A("s_addc_u32 s25, s7, 0"); A("s_mov_b32 s26, 524288"); A("s_mov_b32 s27, 0x00020000")
    A("s_add_u32 s28, s8, s52"); A("s_addc_u32 s29, s9, 0"); A("s_mov_b32 s30, 524288"); A("s_mov_b32 s31, 0x00020000")
    A("s_mov_b32 s32, s10"); A("s_mov_b32 s33, s11"); A(f"s_mov_b32 s34, {WQ_BYTES}"); A("s_mov_b32 s35, 0x00020000")
    A("s_mov_b32 s36, s18"); A("s_mov_b32 s37, s19"); A(f"s_mov_b32 s38, {O_BYTES}"); A("s_mov_b32 s39, 0x00020000")
    A("s_mov_b32 s92, s16"); A("s_mov_b32 s93, s17"); A("s_mov_b32 s94, 256"); A("s_mov_b32 s95, 0x00020000")
    A("s_cmp_eq_u32 s2, 0")
    A("s_cselect_b32 s94, s94, 0")
    A("s_cmp_eq_u32 s40, 0")
    A("s_cselect_b32 s94, s94, 0")
    stamp(A)
    A("v_and_b32 v1, 63, v0")
    A("v_and_b32 v2, 31, v1")
    A("v_lshrrev_b32 v3, 5, v1")
    A("v_bfe_u32 v4, v1, 4, 1")
    A("v_bfe_u32 v5, v1, 2, 2")
    A("v_and_b32 v6, 3, v1")
    A("s_lshl_b32 s52, s41, 13")
    for q in range(8):
        A(f"v_add_u32 v9, {2*q}, v3")
        A(f"v_xor_b32 v38, v9, v2")
        A(f"v_lshlrev_b32 v38, 4, v38")
        A(f"v_lshl_add_u32 v38, v9, 9, v38")
        A(f"v_add_u32 v{28+q}, s52, v38")
    for par in range(2):
        A(f"v_lshlrev_b32 v9, 2, v3")
        A(f"v_add_u32 v9, {8*par}, v9")
        A(f"v_xor_b32 v9, v9, v2")
        A(f"v_lshlrev_b32 v9, 4, v9")
        A(f"v_lshl_add_u32 v9, v3, 9, v9")
        A(f"v_add_u32 v{36+par}, s52, v9")
    A("s_lshl_b32 s56, s42, 15")
    A("s_lshl_b32 s52, s41, 13")
    A("s_add_u32 s56, s56, s52")
    A("s_lshl_b32 s57, s42, 18")
    A("s_mov_b32 s59, s57")
    def dma_k(buf):
        for q in range(8):
            A(f"s_add_u32 m0, s56, {buf*16384 + q*1024}")
            A("s_nop 0")
            A.vm(f"buffer_load_dwordx4 v{28+q}, s[24:27], s57 offen lds", "K")
        A("s_add_u32 s57, s57, 16384")
    def dma_v(buf):
        for q in range(8):
            A(f"s_add_u32 m0, s56, {65536 + buf*16384 + q*1024}")
            A(f"s_add_u32 s58, s59, {q*1024}")
            A.vm(f"buffer_load_dwordx4 v{36+(q&1)}, s[28:31], s58 offen lds", "V")
        A("s_add_u32 s59, s59, 16384")
    dma_k(0)
    dma_k(1)
    A("s_lshl_b32 s52, s41, 5")
    A("s_add_u32 s52, s52, s50")
    A("v_add_u32 v7, s52, v2")
    A("v_mul_u32_u24 v8, 896, v7")
    A("v_lshl_add_u32 v8, v3, 4, v8")
    for ks in range(28):
        A.vm(f"buffer_load_dwordx4 v[{128+4*ks}:{131+4*ks}], v8, s[20:23], 0 offen offset:{ks*32}", "X")
    for par in range(2):
        A(f"v_lshlrev_b32 v9, 2, v3")
        A(f"v_add_u32 v9, {8*par}, v9")
        A(f"v_xor_b32 v9, v9, v2")
        A(f"v_lshlrev_b32 v9, 4, v9")
        A(f"v_lshl_add_u32 v9, v3, 13, v9")
        A(f"s_lshl_b32 s52, s48, 9")
        A(f"v_add_u32 v{10+par}, s52, v9")
    def wq_issue(c):
        slot = c % 6
        for q in range(4):
            A(f"s_lshl_b32 s53, s40, 12")
            A(f"s_add_u32 m0, s53, {65536 + slot*16384 + q*1024}")
            A(f"s_lshl_b32 s53, s40, 16")
            A(f"s_add_u32 s53, s53, {(c*32 + 2*q)*8192}")
            A.vm(f"buffer_load_dwordx4 v{10+(q&1)}, s[32:35], s53 offen lds", f"W{c}")
    for c in range(6):
        wq_issue(c)
    A("v_lshlrev_b32 v9, 3, v3")
    A("v_add_u32 v9, v9, v5")
    A("v_lshlrev_b32 v9, 9, v9")
    A("s_lshl_b32 s52, s42, 8")
    A("s_add_u32 s52, s52, 65536")
    A("v_add_u32 v9, s52, v9")
    A("v_lshrrev_b32 v16, 1, v6")
    A("v_lshl_add_u32 v16, v4, 1, v16")
    A("v_lshl_add_u32 v9, v16, 4, v9")
    A("v_and_b32 v16, 1, v6")
    A("v_lshl_add_u32 v9, v16, 3, v9")
    for T in range(4):
        A(f"v_xor_b32 v16, {T}, v5")
        A(f"v_lshl_add_u32 v{12+T}, v16, 6, v9")
        A(f"v_add_u32 v{20+T}, 65536, v{12+T}")
    for i in range(64):
        A(f"v_mov_b32 v{56+i}, 0")
    for c in range(14):
        slot = c % 6
        A.wait_vm(f"W{c}")
        A("s_barrier")
        if c >= 1 and c+5 < 14:
            wq_issue(c+5)
        for ksl in range(2):
            for T in range(4):
                o = (slot&3)*16384 + ksl*8192
                vb = 12+T if slot < 4 else 20+T
                A.lg(f"ds_read_b64_tr_b16 a[{KF+16*ksl+4*T}:{KF+16*ksl+4*T+1}], v{vb} offset:{o}", f"q{ksl}")
                A.lg(f"ds_read_b64_tr_b16 a[{KF+16*ksl+4*T+2}:{KF+16*ksl+4*T+3}], v{vb} offset:{o+2048}", f"q{ksl}")
        for ksl in range(2):
            ks = 2*c + ksl
            A.wait_lg(f"q{ksl}")
            for T in range(4):
                A(f"v_mfma_f32_32x32x16_bf16 v[{56+16*T}:{71+16*T}], a[{KF+16*ksl+4*T}:{KF+16*ksl+4*T+3}], v[{128+4*ks}:{131+4*ks}], v[{56+16*T}:{71+16*T}]")
    stamp(A)
    A("s_barrier")
    dma_v(0)
    A.nop(8)
    A("v_lshlrev_b32 v16, 4, v1")
    A("s_lshl_b32 s52, s40, 13")
    A("s_add_u32 s52, s52, 131072")
    A("v_add_u32 v16, s52, v16")
    for T in range(4):
        for u in range(2):
            b0 = 56 + 16*T + 8*u
            A(f"v_cvt_pk_bf16_f32 v120, v{b0}, v{b0+1}")
            A(f"v_cvt_pk_bf16_f32 v121, v{b0+2}, v{b0+3}")
            A(f"v_cvt_pk_bf16_f32 v122, v{b0+4}, v{b0+5}")
            A(f"v_cvt_pk_bf16_f32 v123, v{b0+6}, v{b0+7}")
            A("s_nop 1")
            A("v_permlane32_swap_b32 v120, v122")
            A("v_permlane32_swap_b32 v121, v123")
            A("s_nop 1")
            A.lg(f"ds_write_b128 v16, v[120:123] offset:{(2*T+u)*1024}", "qw")
    A.wait_lg("qw")
    A("s_barrier")
    A("v_lshlrev_b32 v16, 4, v1")
    A("s_lshl_b32 s52, s41, 13")
    A("s_add_u32 s52, s52, 131072")
    A("v_add_u32 v16, s52, v16")
    for kk in range(16):
        A.lg(f"ds_read_b128 a[{QF+4*kk}:{QF+4*kk+3}], v16 offset:{(kk>>3)*16384 + (kk&7)*1024}", "qr")
    A("s_lshl_b32 s52, s42, 15")
    A("v_lshlrev_b32 v9, 9, v2")
    A("v_add_u32 v9, s52, v9")
    A("v_and_b32 v24, 15, v2")
    for k0 in range(8):
        A(f"v_add_u32 v25, {2*k0}, v3")
        A(f"v_xor_b32 v25, v25, v24")
        A(f"v_lshl_add_u32 v{16+k0}, v25, 4, v9")
    A("v_lshlrev_b32 v9, 2, v3")
    A("v_add_u32 v9, v9, v5")
    A("v_lshlrev_b32 v9, 9, v9")
    A("s_add_u32 s52, s52, 65536")
    A("v_add_u32 v9, s52, v9")
    A("v_lshrrev_b32 v38, 1, v6")
    A("v_lshl_add_u32 v38, v4, 1, v38")
    A("v_lshl_add_u32 v9, v38, 4, v9")
    A("v_and_b32 v38, 1, v6")
    A("v_lshl_add_u32 v9, v38, 3, v9")
    for T0 in range(4):
        A(f"v_xor_b32 v38, {T0}, v5")
        A(f"v_lshl_add_u32 v{24+T0}, v38, 6, v9")
    A("v_mov_b32 v40, 0xff800000")
    A("v_mov_b32 v41, 0")
    for i in range(128):
        A(f"v_mov_b32 v{OA+i}, 0")
    A(f"s_mov_b32 s55, {f32hex(CSCALE)}")
    A("v_mov_b32 v39, 8.0")
    A.wait_lg("qr")
    A.wait_vm("K")
    A("s_barrier")
    def k_reads(buf):
        if 'a' in EXP and uid[0] > 0: return
        for kk in range(16):
            A.lg(f"ds_read_b128 a[{KF+4*kk}:{KF+4*kk+3}], v{16+(kk&7)} offset:{buf*16384 + (kk>>3)*256}", f"k{kk}")
    def qk_mfmas(S):
        L = []
        for kk in range(16):
            c = "0" if kk == 0 else f"v[{S}:{S+15}]"
            L.append(("wl", f"k{kk}"))
            L.append(f"v_mfma_f32_32x32x16_bf16 v[{S}:{S+15}], a[{KF+4*kk}:{KF+4*kk+3}], a[{QF+4*kk}:{QF+4*kk+3}], {c}")
        return L
    def emit(L):
        for it in L:
            if isinstance(it, tuple):
                if it[0] == "wl": A.wait_lg(it[1])
                elif it[0] == "lg": A.lg(it[1], it[2])
                elif it[0] == "vm": A.vm(it[1], it[2])
            else:
                A(it)
    uid = [0]
    k_reads(0)
    emit(qk_mfmas(SA))
    A("s_mov_b32 s43, 0")
    stamp(A)
    def pv_mfmas():
        L = []
        for t in range(2):
            for T in range(8):
                L.append(f"v_mfma_f32_32x32x16_bf16 v[{OA+16*T}:{OA+16*T+15}], a[{VF+32*t+4*T}:{VF+32*t+4*T+3}], v[{PK+4*t}:{PK+4*t+3}], v[{OA+16*T}:{OA+16*T+15}]")
        return L
    class Rec:
        def __init__(self): self.L = []
    def body(par, first=False, last=False):
        S = SA if par == 0 else SB
        Sn = SB if par == 0 else SA
        u = uid[0]; uid[0] += 1
        if STAMP and not last and par == 0: lstamp(A, 0)
        A("s_waitcnt vmcnt(0)")
        A.vmq = []
        if STAMP and not last and par == 0: lstamp(A, 1)
        A("s_barrier")
        if STAMP and not last and par == 0: lstamp(A, 2)
        f1 = []
        vdma = []
        if not last:
            for q in range(8):
                g = [f"s_add_u32 m0, s56, {par*16384 + q*1024}", "s_nop 0",
                     ("vm", f"buffer_load_dwordx4 v{28+q}, s[24:27], s57 offen lds", "K")]
                if q == 7: g.append("s_add_u32 s57, s57, 16384")
                if 'b' not in EXP: f1.append(g)
            for kk in range(16):
                if 'a' not in EXP: f1.append([("lg", f"ds_read_b128 a[{KF+4*kk}:{KF+4*kk+3}], v{16+(kk&7)} offset:{(1-par)*16384 + (kk>>3)*256}", f"k{kk}")])
            for q in range(8):
                g = [f"s_add_u32 m0, s56, {65536 + (1-par)*16384 + q*1024}", f"s_add_u32 s58, s59, {q*1024}",
                     ("vm", f"buffer_load_dwordx4 v{36+(q&1)}, s[28:31], s58 offen lds", "V")]
                if q == 7: g.append("s_add_u32 s59, s59, 16384")
                f1.append(g)
        mx = [f"v_max3_f32 v42, v{S}, v{S+1}, v{S+2}"]
        for i in range(3, 15, 2):
            mx.append(f"v_max3_f32 v42, v42, v{S+i}, v{S+i+1}")
        mx += [f"v_max_f32 v42, v42, v{S+15}", "v_mov_b32 v43, v42", "s_nop 1", "v_permlane32_swap_b32 v42, v43",
               "v_max_f32 v42, v42, v43", "v_mul_f32 v42, s55, v42", "v_sub_f32 v43, v42, v40", "v_cmp_gt_f32 vcc, v43, v39"]
        f1 += [[m] for m in mx]
        if first:
            for g in f1: emit(g)
        else:
            A.wait_lg("v")
            if last: A.nop(16)
            for it in interleave([[m] for m in pv_mfmas()], f1): emit(it)
        A("s_nop 4")
        A(f"s_cbranch_vccz LA_nr{u}")
        A.nop(16)
        A("v_max_f32 v42, v40, v42")
        A("v_sub_f32 v43, v40, v42")
        A("v_exp_f32 v43, v43")
        A("v_mov_b32 v40, v42")
        A("s_nop 0")
        A("v_mul_f32 v41, v41, v43")
        for i in range(128):
            A(f"v_mul_f32 v{OA+i}, v{OA+i}, v43")
        A.label(f"LA_nr{u}")
        fill = []
        for i in range(16):
            fill.append(f"v_fma_f32 v{S+i}, v{S+i}, s55, -v40")
        vr = []
        for t in range(2):
            for T in range(8):
                for sh in range(2):
                    vr.append(("lg", f"ds_read_b64_tr_b16 a[{VF+32*t+4*T+2*sh}:{VF+32*t+4*T+2*sh+1}], v{24+(T&3)} offset:{par*16384 + t*8192 + sh*4096 + (T>>2)*256}", "v"))
        ex = [f"v_exp_f32 v{S+i}, v{S+i}" for i in range(16)]
        mix = []
        for i in range(16):
            mix.append(ex[i])
            if 'a' not in EXP: mix.append(vr[2*i]); mix.append(vr[2*i+1])
        if vdma:
            m2 = []
            for i in range(len(mix)):
                m2.append(mix[i])
                if i % 6 == 5: m2.append(vdma[i//6])
            mix = m2
        fill += mix
        fill += [f"v_add_f32 v41, v41, v{S+i}" for i in range(16)]
        fill += [f"v_cvt_pk_bf16_f32 v{PK+i}, v{S+2*i}, v{S+2*i+1}" for i in range(8)]
        if not last:
            mf = qk_mfmas(Sn)
            pairs = [[mf[2*i], mf[2*i+1]] for i in range(16)]
            for it in interleave(pairs, fill):
                if isinstance(it, list): emit(it)
                else: emit([it])
        else:
            emit(fill)
        A("s_add_u32 s43, s43, 1")
    body(0, first=True)
    A.label("LA_loop")
    body(1)
    body(0)
    A("s_cmp_lt_u32 s43, 15")
    A("s_cbranch_scc1 LA_loop")
    body(1, last=True)
    A("s_nop 1")
    A.wait_lg("v")
    for m in pv_mfmas(): A(m)
    A.nop(16)
    stamp(A)
    A("s_barrier")
    A("v_mov_b32 v43, v41")
    A("s_nop 1")
    A("v_permlane32_swap_b32 v41, v43")
    A("v_add_f32 v41, v41, v43")
    A("v_lshlrev_b32 v16, 4, v1")
    A("s_mul_i32 s52, s40, 16896")
    A("v_add_u32 v16, s52, v16")
    A("v_lshlrev_b32 v17, 3, v1")
    A("v_add_u32 v17, s52, v17")
    A("s_cmp_eq_u32 s42, 0")
    A("s_cbranch_scc0 LA_ep1")
    def epi(kv):
        oth = OA + 64*(1-kv)
        own = OA + 64*kv
        for j in range(16):
            A(f"ds_write_b128 v16, v[{oth+4*j}:{oth+4*j+3}] offset:{j*1024}")
        A("ds_write_b64 v17, v[40:41] offset:16384")
        A("s_waitcnt lgkmcnt(0)")
        A("s_barrier")
        A("s_xor_b32 s53, s40, 2")
        A("s_mul_i32 s53, s53, 16896")
        A("v_lshlrev_b32 v18, 4, v1")
        A("v_add_u32 v18, s53, v18")
        A("v_lshlrev_b32 v19, 3, v1")
        A("v_add_u32 v19, s53, v19")
        A("ds_read_b64 v[44:45], v19 offset:16384")
        for j in range(16):
            A(f"ds_read_b128 v[{oth+4*j}:{oth+4*j+3}], v18 offset:{j*1024}")
        A("s_waitcnt lgkmcnt(0)")
        A("v_max_f32 v42, v40, v44")
        A("v_sub_f32 v43, v40, v42")
        A("v_exp_f32 v43, v43")
        A("v_sub_f32 v46, v44, v42")
        A("v_exp_f32 v46, v46")
        A("v_mul_f32 v41, v41, v43")
        A("v_fma_f32 v41, v45, v46, v41")
        A("v_rcp_f32 v41, v41")
        A("s_nop 0")
        A("v_mul_f32 v43, v43, v41")
        A("v_mul_f32 v46, v46, v41")
        for i in range(64):
            A(f"v_mul_f32 v{own+i}, v{own+i}, v43")
            A(f"v_fma_f32 v{own+i}, v{oth+i}, v46, v{own+i}")
        A("v_lshlrev_b32 v16, 13, v7")
        A("s_lshl_b32 s53, s48, 9")
        A("v_add_u32 v16, s53, v16")
        A("v_lshl_add_u32 v16, v3, 4, v16")
        A("s_lshl_b32 s53, s41, 5")
        A("v_add_u32 v17, s53, v2")
        A("v_cmp_gt_u32 vcc, 56, v17")
        A("v_mov_b32 v17, 0x7fff0000")
        A("s_nop 1")
        A("v_cndmask_b32 v16, v17, v16, vcc")
        for T in range(4):
            for u in range(2):
                b0 = own + 16*T + 8*u
                A(f"v_cvt_pk_bf16_f32 v120, v{b0}, v{b0+1}")
                A(f"v_cvt_pk_bf16_f32 v121, v{b0+2}, v{b0+3}")
                A(f"v_cvt_pk_bf16_f32 v122, v{b0+4}, v{b0+5}")
                A(f"v_cvt_pk_bf16_f32 v123, v{b0+6}, v{b0+7}")
                A("s_nop 1")
                A("v_permlane32_swap_b32 v120, v122")
                A("v_permlane32_swap_b32 v121, v123")
                A("s_nop 1")
                A(f"buffer_store_dwordx4 v[120:123], v16, s[36:39], 0 offen offset:{(4*kv+T)*64 + u*32}")
                A("s_nop 1")
    epi(0)
    A("s_branch LA_fin")
    A.label("LA_ep1")
    epi(1)
    A.label("LA_fin")
    stamp(A)
    A.label("LA_end")
    A("s_endpgm")

def gen_oproj(A):
    A.raw(".globl oproj_kernel")
    A.raw(".p2align 8")
    A.raw(".type oproj_kernel,@function")
    A.label("oproj_kernel")
    A("s_cmp_ge_u32 s2, 224")
    A("s_cbranch_scc1 LB_end")
    A("s_load_dwordx16 s[4:19], s[0:1], 0")
    A("v_lshrrev_b32 v1, 6, v0")
    A("s_nop 0")
    A("v_readfirstlane_b32 s40, v1")
    A("s_and_b32 s44, s2, 7")
    A("s_lshr_b32 s45, s2, 3")
    A("s_mov_b32 s41, 0x24924925")
    A("s_mul_hi_u32 s42, s45, s41")
    A("s_mul_i32 s43, s42, 7")
    A("s_sub_u32 s43, s45, s43")
    A("s_lshl_b32 s42, s42, 3")
    A("s_add_u32 s42, s42, s44")
    A("s_cmp_ge_u32 s42, 28")
    A("s_cbranch_scc1 LB_end")
    A("s_waitcnt lgkmcnt(0)")
    A("s_mov_b32 s20, s18"); A("s_mov_b32 s21, s19"); A(f"s_mov_b32 s22, {O_BYTES}"); A("s_mov_b32 s23, 0x00020000")
    A("s_mov_b32 s24, s12"); A("s_mov_b32 s25, s13"); A(f"s_mov_b32 s26, {WO_BYTES}"); A("s_mov_b32 s27, 0x00020000")
    A("s_mov_b32 s28, s14"); A("s_mov_b32 s29, s15"); A(f"s_mov_b32 s30, {OUT_BYTES}"); A("s_mov_b32 s31, 0x00020000")
    A("v_and_b32 v1, 63, v0")
    A("v_and_b32 v2, 31, v1")
    A("v_lshrrev_b32 v3, 5, v1")
    A("v_bfe_u32 v4, v1, 4, 1")
    A("v_bfe_u32 v5, v1, 2, 2")
    A("v_and_b32 v6, 3, v1")
    A("s_lshl_b32 s44, s42, 5")
    A("v_add_u32 v7, s44, v2")
    A("v_lshlrev_b32 v8, 13, v7")
    A("v_lshl_add_u32 v8, v3, 4, v8")
    A("s_lshl_b32 s44, s40, 11")
    A("v_add_u32 v8, s44, v8")
    A("v_lshrrev_b32 v10, 3, v1")
    A("v_mul_u32_u24 v9, 896, v10")
    A("v_and_b32 v10, 7, v1")
    A("v_lshlrev_b32 v11, 2, v4")
    A("v_xor_b32 v10, v10, v11")
    A("v_lshl_add_u32 v9, v10, 4, v9")
    A("s_lshl_b32 s44, s43, 7")
    A("v_add_u32 v9, s44, v9")
    A("v_lshlrev_b32 v10, 3, v3")
    A("v_add_u32 v10, v10, v5")
    A("v_lshlrev_b32 v10, 7, v10")
    A("s_lshl_b32 s44, s40, 15")
    A("v_add_u32 v10, s44, v10")
    A("v_lshrrev_b32 v11, 1, v6")
    A("v_lshl_add_u32 v11, v4, 1, v11")
    A("v_lshl_add_u32 v10, v11, 4, v10")
    A("v_and_b32 v11, 1, v6")
    A("v_lshl_add_u32 v10, v11, 3, v10")
    A("v_lshrrev_b32 v11, 1, v5")
    for nti in range(2):
        A(f"v_xor_b32 v14, {nti}, v11")
        A(f"v_lshl_add_u32 v{12+nti}, v14, 6, v10")
    for i in range(32):
        A(f"v_mov_b32 v{64+i}, 0")
    A("s_mul_i32 s45, s40, 917504")
    A("s_lshl_b32 s46, s40, 15")
    def issue(chunk):
        slot = chunk & 3
        for q in range(8):
            A(f"s_add_u32 m0, s46, {slot*8192 + q*1024}")
            A(f"s_add_u32 s47, s45, {(chunk*64 + q*8)*896}")
            A(f"buffer_load_dwordx4 v9, s[24:27], s47 offen lds")
        for ksl in range(4):
            A(f"buffer_load_dwordx4 v[{128+16*slot+4*ksl}:{131+16*slot+4*ksl}], v8, s[20:23], 0 offen offset:{chunk*128 + ksl*32}")
    for c in range(3):
        issue(c)
    for c in range(16):
        if c + 3 < 16:
            issue(c+3)
            A("s_waitcnt vmcnt(36)")
        else:
            A(f"s_waitcnt vmcnt({12*(15-c)})")
        slot = c & 3
        for ksl in range(4):
            for nti in range(2):
                for sh in range(2):
                    A(f"ds_read_b64_tr_b16 a[{8*ksl+4*nti+2*sh}:{8*ksl+4*nti+2*sh+1}], v{12+nti} offset:{slot*8192 + ksl*2048 + sh*512}")
        for ksl in range(4):
            A(f"s_waitcnt lgkmcnt({12-4*ksl})")
            for nti in range(2):
                A(f"v_mfma_f32_32x32x16_bf16 v[{64+16*nti}:{79+16*nti}], a[{8*ksl+4*nti}:{8*ksl+4*nti+3}], v[{128+16*slot+4*ksl}:{131+16*slot+4*ksl}], v[{64+16*nti}:{79+16*nti}]")
    A.nop(16)
    A("v_lshlrev_b32 v16, 4, v1")
    A("v_add_u32 v17, s46, v16")
    for j in range(8):
        A(f"ds_write_b128 v17, v[{64+4*j}:{67+4*j}] offset:{j*1024}")
    A("s_waitcnt lgkmcnt(0)")
    A("s_barrier")
    A("s_cmp_lg_u32 s40, 0")
    A("s_cbranch_scc1 LB_end")
    for w in range(1, 4):
        A(f"v_add_u32 v18, {w*32768}, v16")
        for j in range(8):
            A(f"ds_read_b128 v[{128+4*j}:{131+4*j}], v18 offset:{j*1024}")
        A("s_waitcnt lgkmcnt(0)")
        for i in range(32):
            A(f"v_add_f32 v{64+i}, v{64+i}, v{128+i}")
    A("v_mul_u32_u24 v16, 896, v7")
    A("s_lshl_b32 s44, s43, 7")
    A("v_add_u32 v16, s44, v16")
    A("v_lshl_add_u32 v16, v3, 4, v16")
    for nti in range(2):
        for u in range(2):
            b0 = 64 + 16*nti + 8*u
            A(f"v_cvt_pk_bf16_f32 v120, v{b0}, v{b0+1}")
            A(f"v_cvt_pk_bf16_f32 v121, v{b0+2}, v{b0+3}")
            A(f"v_cvt_pk_bf16_f32 v122, v{b0+4}, v{b0+5}")
            A(f"v_cvt_pk_bf16_f32 v123, v{b0+6}, v{b0+7}")
            A("s_nop 1")
            A("v_permlane32_swap_b32 v120, v122")
            A("v_permlane32_swap_b32 v121, v123")
            A("s_nop 1")
            A(f"buffer_store_dwordx4 v[120:123], v16, s[28:31], 0 offen offset:{nti*64 + u*32}")
            A("s_nop 1")
    A.label("LB_end")
    A("s_endpgm")

def kd(A, name, vgpr, accum):
    A.raw(f".amdhsa_kernel {name}")
    A.raw(f"  .amdhsa_next_free_vgpr {vgpr}")
    A.raw("  .amdhsa_next_free_sgpr 102")
    A.raw(f"  .amdhsa_accum_offset {accum}")
    A.raw("  .amdhsa_group_segment_fixed_size 0")
    A.raw("  .amdhsa_kernarg_size 64")
    A.raw("  .amdhsa_user_sgpr_count 2")
    A.raw("  .amdhsa_user_sgpr_kernarg_segment_ptr 1")
    A.raw("  .amdhsa_system_sgpr_workgroup_id_x 1")
    A.raw(".end_amdhsa_kernel")

def gen_file():
    A = Asm()
    A.raw("; @launch kernel=attn_kernel grid=(256,1,1) block=(256,1,1) lds=163840")
    A.raw("; @launch kernel=oproj_kernel grid=(224,1,1) block=(256,1,1) lds=131072")
    A.raw('.amdgcn_target "amdgcn-amd-amdhsa--gfx950"')
    A.raw(".text")
    gen_attn(A)
    gen_oproj(A)
    A.raw('.section .rodata,"a"')
    A.raw(".p2align 6")
    kd(A, "attn_kernel", 448, 256)
    A.raw(".p2align 6")
    kd(A, "oproj_kernel", 288, 256)
    return A.text()

if __name__ == "__main__":
    if len(sys.argv) > 2: STAMP = True
    open(sys.argv[1], "w").write(gen_file())
```

```python
import sys
import g3
from g3 import Asm, f32hex, interleave, kd, CSCALE, X_BYTES, WQ_BYTES, WO_BYTES, O_BYTES, OUT_BYTES
SA, SB, PK, OA = 96, 112, 48, 128
QF, KF, VF = 0, 64, 128
QA = 128
LSE_OFF = 2*O_BYTES
WS_BYTES = 2*O_BYTES + 2*896*16*4

def gen_attn(A):
    A.raw(".globl attn_kernel"); A.raw(".p2align 8"); A.raw(".type attn_kernel,@function"); A.label("attn_kernel")
    A("s_cmp_ge_u32 s2, 256")
    A("s_cbranch_scc1 LA_end")
    A("s_load_dwordx16 s[4:19], s[0:1], 0")
    A("v_lshrrev_b32 v1, 6, v0")
    A("s_nop 0")
    A("v_readfirstlane_b32 s40, v1")
    A("s_and_b32 s46, s2, 7")
    A("s_lshr_b32 s45, s2, 3")
    A("s_lshr_b32 s44, s45, 2")
    A("s_lshr_b32 s49, s45, 1")
    A("s_and_b32 s49, s49, 1")
    A("s_and_b32 s42, s45, 1")
    A("s_lshl_b32 s48, s44, 1")
    A("s_add_u32 s48, s48, s49")
    A("s_mul_i32 s50, s46, 112")
    A("s_lshl_b32 s51, s46, 3")
    A("s_add_u32 s51, s51, s44")
    A("s_waitcnt lgkmcnt(0)")
    A("s_mov_b32 s20, s4"); A("s_mov_b32 s21, s5"); A(f"s_mov_b32 s22, {X_BYTES}"); A("s_mov_b32 s23, 0x00020000")
    A("s_lshl_b32 s52, s51, 19")
    A("s_add_u32 s24, s6, s52"); A("s_addc_u32 s25, s7, 0"); A("s_mov_b32 s26, 524288"); A("s_mov_b32 s27, 0x00020000")
    A("s_add_u32 s28, s8, s52"); A("s_addc_u32 s29, s9, 0"); A("s_mov_b32 s30, 524288"); A("s_mov_b32 s31, 0x00020000")
    A("s_mov_b32 s32, s10"); A("s_mov_b32 s33, s11"); A(f"s_mov_b32 s34, {WQ_BYTES}"); A("s_mov_b32 s35, 0x00020000")
    A("s_mov_b32 s36, s18"); A("s_mov_b32 s37, s19"); A(f"s_mov_b32 s38, {WS_BYTES}"); A("s_mov_b32 s39, 0x00020000")
    A("s_mov_b32 s92, s16"); A("s_mov_b32 s93, s17"); A("s_mov_b32 s94, 256"); A("s_mov_b32 s95, 0x00020000")
    A("s_cmp_eq_u32 s2, 0"); A("s_cselect_b32 s94, s94, 0"); A("s_cmp_eq_u32 s40, 0"); A("s_cselect_b32 s94, s94, 0")
    g3.stamp(A)
    A("v_and_b32 v1, 63, v0")
    A("v_and_b32 v2, 31, v1")
    A("v_lshrrev_b32 v3, 5, v1")
    A("v_bfe_u32 v4, v1, 4, 1")
    A("v_bfe_u32 v5, v1, 2, 2")
    A("v_and_b32 v6, 3, v1")
    A("s_lshl_b32 s52, s40, 3")
    for q in range(4):
        A(f"v_add_u32 v9, {2*q}, v3")
        A("v_add_u32 v9, s52, v9")
        A("v_and_b32 v38, 15, v9")
        A("v_xor_b32 v38, v38, v2")
        A("v_lshlrev_b32 v38, 4, v38")
        A(f"v_lshl_add_u32 v{28+q}, v9, 9, v38")
    for par in range(2):
        A("v_lshlrev_b32 v9, 2, v3")
        A(f"v_add_u32 v9, {8*par}, v9")
        A("v_xor_b32 v9, v9, v2")
        A("v_lshlrev_b32 v9, 4, v9")
        A(f"v_lshl_add_u32 v{36+par}, v3, 9, v9")
    A("s_lshl_b32 s56, s40, 12")
    A("s_lshl_b32 s57, s42, 18")
    A("s_add_u32 s59, s57, s56")
    NB = [0]
    def dma_k_groups(n):
        G = []
        for q in range(4):
            G.append([f"s_add_u32 m0, s56, {(n&3)*16384 + q*1024}", f"s_add_u32 s58, s57, {(n-NB[0])*16384}",
                      ("vm", f"buffer_load_dwordx4 v{28+q}, s[24:27], s58 offen lds", f"K{n}")])
        return G
    def dma_v_groups(n):
        G = []
        for q in range(4):
            G.append([f"s_add_u32 m0, s56, {65536 + (n&3)*16384 + q*1024}", f"s_add_u32 s58, s59, {(n-NB[0])*16384 + q*1024}",
                      ("vm", f"buffer_load_dwordx4 v{36+(q&1)}, s[28:31], s58 offen lds", f"V{n}")])
        return G
    def emit(L):
        for it in L:
            if isinstance(it, tuple):
                if it[0] == "wl": A.wait_lg(it[1])
                elif it[0] == "lg": A.lg(it[1], it[2])
                elif it[0] == "vm": A.vm(it[1], it[2])
            else:
                A(it)
    for par in range(2):
        A("v_lshlrev_b32 v9, 2, v3")
        A(f"v_add_u32 v9, {8*par}, v9")
        A("v_xor_b32 v9, v9, v2")
        A("v_lshlrev_b32 v9, 4, v9")
        A("v_lshl_add_u32 v9, v3, 13, v9")
        A("s_lshl_b32 s52, s48, 9")
        A(f"v_add_u32 v{10+par}, s52, v9")
    def wq_issue(c):
        slot = c % 6
        for q in range(4):
            A(f"s_add_u32 m0, s56, {65536 + slot*16384 + q*1024}")
            A("s_lshl_b32 s53, s40, 16")
            A(f"s_add_u32 s53, s53, {(c*32 + 2*q)*8192}")
            A.vm(f"buffer_load_dwordx4 v{10+(q&1)}, s[32:35], s53 offen lds", f"W{c}")
    A("s_lshl_b32 s52, s40, 5")
    A("s_add_u32 s52, s52, s50")
    A("v_add_u32 v7, s52, v2")
    A("v_mul_u32_u24 v8, 896, v7")
    A("v_lshl_add_u32 v8, v3, 4, v8")
    def x_groups(c):
        return [[("vm", f"buffer_load_dwordx4 v[{128+4*ks}:{131+4*ks}], v8, s[20:23], 0 offen offset:{ks*32}", f"X{c}")] for ks in (2*c, 2*c+1)]
    wq_issue(0)
    for g in x_groups(0): emit(g)
    wq_issue(1)
    for g in x_groups(1): emit(g)
    for c in range(2, 6):
        wq_issue(c)
    for g in x_groups(2): emit(g)
    for n in range(2):
        for g in dma_k_groups(n): emit(g)
    A("v_lshlrev_b32 v9, 3, v3")
    A("v_add_u32 v9, v9, v5")
    A("v_lshlrev_b32 v9, 9, v9")
    A("v_add_u32 v9, 65536, v9")
    A("v_lshrrev_b32 v16, 1, v6")
    A("v_lshl_add_u32 v16, v4, 1, v16")
    A("v_lshl_add_u32 v9, v16, 4, v9")
    A("v_and_b32 v16, 1, v6")
    A("v_lshl_add_u32 v9, v16, 3, v9")
    for T in range(4):
        A(f"v_xor_b32 v16, {T}, v5")
        A(f"v_lshl_add_u32 v{12+T}, v16, 6, v9")
        A(f"v_add_u32 v{20+T}, 65536, v{12+T}")
    def q_reads(c):
        slot = c % 6; fb = 64*(c & 1)
        G = []
        for ksl in range(2):
            for T in range(8):
                o = (slot&3)*16384 + ksl*8192 + (T>>2)*256
                vb = 12+(T&3) if slot < 4 else 20+(T&3)
                G.append([("lg", f"ds_read_b64_tr_b16 a[{fb+32*ksl+4*T}:{fb+32*ksl+4*T+1}], v{vb} offset:{o}", f"q{c}"),
                          ("lg", f"ds_read_b64_tr_b16 a[{fb+32*ksl+4*T+2}:{fb+32*ksl+4*T+3}], v{vb} offset:{o+2048}", f"q{c}")])
        return G
    def wq_groups(c):
        slot = c % 6
        return [[f"s_add_u32 m0, s56, {65536 + slot*16384 + q*1024}", "s_lshl_b32 s53, s40, 16",
                 f"s_add_u32 s53, s53, {(c*32 + 2*q)*8192}",
                 ("vm", f"buffer_load_dwordx4 v{10+(q&1)}, s[32:35], s53 offen lds", f"W{c}")] for q in range(4)]
    g3.stamp(A)
    A.wait_vm("W0")
    A("s_barrier")
    g3.stamp(A)
    for g in q_reads(0): emit(g)
    for c in range(14):
        fb = 64*(c & 1)
        f = []
        if c+1 < 14:
            A.wait_vm(f"W{c+1}")
            A("s_barrier")
            if c >= 1 and c+5 < 14: f += wq_groups(c+5)
            if c in (2, 4): f += dma_k_groups(2 + (c-2)//2)
        if c+3 < 14: f += x_groups(c+3)
        A.wait_vm(f"X{c}")
        A.wait_lg(f"q{c}")
        if c in (3, 8): g3.stamp(A)
        if c+1 < 14: f += q_reads(c+1)
        mf = []
        for ksl in range(2):
            ks = 2*c + ksl
            for T in range(8):
                cc = "0" if ks == 0 else f"a[{QA+16*T}:{QA+16*T+15}]"
                mf.append([f"v_mfma_f32_32x32x16_bf16 a[{QA+16*T}:{QA+16*T+15}], a[{fb+32*ksl+4*T}:{fb+32*ksl+4*T+3}], v[{128+4*ks}:{131+4*ks}], {cc}"])
        for it in interleave(mf, f): emit(it)
    g3.stamp(A)
    A("s_barrier")
    for n in range(3):
        for g in dma_v_groups(n): emit(g)
    A.nop(16)
    for T in range(8):
        for u in range(2):
            b0 = QA + 16*T + 8*u
            for i in range(8):
                A(f"v_accvgpr_read_b32 v{56+i}, a{b0+i}")
            A("s_nop 0")
            for i in range(4):
                A(f"v_cvt_pk_bf16_f32 v{120+i}, v{56+2*i}, v{57+2*i}")
            A("s_nop 1")
            A("v_permlane32_swap_b32 v120, v122")
            A("v_permlane32_swap_b32 v121, v123")
            A("s_nop 1")
            for i in range(4):
                A(f"v_accvgpr_write_b32 a{QF+4*(2*T+u)+i}, v{120+i}")
    A("v_lshlrev_b32 v9, 9, v2")
    A("v_and_b32 v24, 15, v2")
    for k0 in range(8):
        A(f"v_add_u32 v25, {2*k0}, v3")
        A("v_xor_b32 v25, v25, v24")
        A(f"v_lshl_add_u32 v{16+k0}, v25, 4, v9")
    A("v_lshlrev_b32 v9, 2, v3")
    A("v_add_u32 v9, v9, v5")
    A("v_lshlrev_b32 v9, 9, v9")
    A("v_add_u32 v9, 65536, v9")
    A("v_lshrrev_b32 v38, 1, v6")
    A("v_lshl_add_u32 v38, v4, 1, v38")
    A("v_lshl_add_u32 v9, v38, 4, v9")
    A("v_and_b32 v38, 1, v6")
    A("v_lshl_add_u32 v9, v38, 3, v9")
    for T0 in range(4):
        A(f"v_xor_b32 v38, {T0}, v5")
        A(f"v_lshl_add_u32 v{24+T0}, v38, 6, v9")
    A("v_mov_b32 v40, 0xff800000")
    A("v_mov_b32 v41, 0")
    for i in range(128):
        A(f"v_mov_b32 v{OA+i}, 0")
    A(f"s_mov_b32 s55, {f32hex(CSCALE)}")
    A("v_mov_b32 v39, 8.0")
    A.wait_vm("K0")
    A("s_barrier")
    def k_read_groups(n):
        return [[("lg", f"ds_read_b128 a[{KF+4*kk}:{KF+4*kk+3}], v{16+(kk&7)} offset:{(n&3)*16384 + (kk>>3)*256}", f"k{kk}")] for kk in range(16)]
    def qk_mfmas(S):
        L = []
        for kk in range(16):
            c = "0" if kk == 0 else f"v[{S}:{S+15}]"
            L.append([("wl", f"k{kk}"), f"v_mfma_f32_32x32x16_bf16 v[{S}:{S+15}], a[{KF+4*kk}:{KF+4*kk+3}], a[{QF+4*kk}:{QF+4*kk+3}], {c}"])
        return L
    def pv_mfmas():
        return [f"v_mfma_f32_32x32x16_bf16 v[{OA+16*T}:{OA+16*T+15}], a[{VF+32*t+4*T}:{VF+32*t+4*T+3}], v[{PK+4*t}:{PK+4*t+3}], v[{OA+16*T}:{OA+16*T+15}]" for t in range(2) for T in range(8)]
    for g in k_read_groups(0): emit(g)
    for g in qk_mfmas(SA): emit(g)
    def body(n):
        first = n == 0; last = n == 15
        S = SA if n % 2 == 0 else SB
        Sn = SB if n % 2 == 0 else SA
        if not last: A.wait_vm(f"K{n+1}")
        A.wait_vm(f"V{n}")
        A("s_barrier")
        f1 = []
        if n+4 < 16: f1 += dma_k_groups(n+4)
        if not last: f1 += k_read_groups(n+1)
        if n+3 < 16: f1 += dma_v_groups(n+3)
        mx = [f"v_max3_f32 v42, v{S}, v{S+1}, v{S+2}"]
        for i in range(3, 15, 2):
            mx.append(f"v_max3_f32 v42, v42, v{S+i}, v{S+i+1}")
        mx += [f"v_max_f32 v42, v42, v{S+15}", "v_mov_b32 v43, v42", "s_nop 1", "v_permlane32_swap_b32 v42, v43",
               "v_max_f32 v42, v42, v43", "v_mul_f32 v42, s55, v42", "v_sub_f32 v43, v42, v40", "v_cmp_gt_f32 vcc, v43, v39"]
        if len(f1) < 12: A.nop(16)
        f1 += [[m] for m in mx]
        if first:
            for g in f1: emit(g)
        else:
            A.wait_lg("v")
            for it in interleave([[m] for m in pv_mfmas()], f1): emit(it)
        A("s_nop 4")
        A(f"s_cbranch_vccz LA_nr{n}")
        A.nop(16)
        A("v_max_f32 v42, v40, v42")
        A("v_sub_f32 v43, v40, v42")
        A("v_exp_f32 v43, v43")
        A("v_mov_b32 v40, v42")
        A("s_nop 0")
        A("v_mul_f32 v41, v41, v43")
        for i in range(128):
            A(f"v_mul_f32 v{OA+i}, v{OA+i}, v43")
        A.label(f"LA_nr{n}")
        fill = [f"v_fma_f32 v{S+i}, v{S+i}, s55, -v40" for i in range(16)]
        vr = []
        for t in range(2):
            for T in range(8):
                for sh in range(2):
                    vr.append(("lg", f"ds_read_b64_tr_b16 a[{VF+32*t+4*T+2*sh}:{VF+32*t+4*T+2*sh+1}], v{24+(T&3)} offset:{(n&3)*16384 + t*8192 + sh*4096 + (T>>2)*256}", "v"))
        for i in range(16):
            fill += [f"v_exp_f32 v{S+i}, v{S+i}", vr[2*i], vr[2*i+1]]
        fill += [f"v_add_f32 v41, v41, v{S+i}" for i in range(16)]
        fill += [f"v_cvt_pk_bf16_f32 v{PK+i}, v{S+2*i}, v{S+2*i+1}" for i in range(8)]
        if not last:
            for it in interleave(qk_mfmas(Sn), fill):
                if isinstance(it, list): emit(it)
                else: emit([it])
        else:
            emit(fill)
    g3.stamp(A)
    for n in range(4): body(n)
    g3.stamp(A)
    A("s_mov_b32 s43, 0")
    A.label("LA_loop")
    for n in range(4, 8): body(n)
    A("s_add_u32 s57, s57, 65536")
    A("s_add_u32 s59, s59, 65536")
    A("s_add_u32 s43, s43, 1")
    A("s_cmp_lt_u32 s43, 2")
    A("s_cbranch_scc1 LA_loop")
    keep = A.lines
    A.lines = []
    for n in range(8, 12): body(n)
    A.lines = keep
    NB[0] = 8
    g3.stamp(A)
    for n in range(12, 16): body(n)
    A("s_nop 1")
    A.wait_lg("v")
    for m in pv_mfmas(): A(m)
    g3.stamp(A)
    A("v_mov_b32 v43, v41")
    A("s_nop 1")
    A("v_permlane32_swap_b32 v41, v43")
    A("v_add_f32 v41, v41, v43")
    A("v_log_f32 v44, v41")
    A("v_rcp_f32 v43, v41")
    A("v_add_f32 v44, v44, v40")
    A("v_lshlrev_b32 v16, 13, v7")
    A("s_lshl_b32 s53, s48, 9")
    A(f"s_mul_i32 s54, s42, {O_BYTES}")
    A("s_add_u32 s53, s53, s54")
    A("v_add_u32 v16, s53, v16")
    A("v_lshl_add_u32 v16, v3, 4, v16")
    A("s_mul_i32 s54, s42, 896")
    A("v_add_u32 v18, s54, v7")
    A("v_lshlrev_b32 v18, 4, v18")
    A("v_add_u32 v18, s48, v18")
    A("v_lshlrev_b32 v18, 2, v18")
    A(f"v_add_u32 v18, {LSE_OFF}, v18")
    A("s_lshl_b32 s53, s40, 5")
    A("v_add_u32 v17, s53, v2")
    A("v_cmp_gt_u32 vcc, 112, v17")
    A("v_mov_b32 v17, 0x7fff0000")
    A("s_nop 1")
    A("v_cndmask_b32 v16, v17, v16, vcc")
    A("v_cndmask_b32 v18, v17, v18, vcc")
    A("buffer_store_dword v44, v18, s[36:39], 0 offen")
    A.nop(16)
    for T in range(8):
        for u in range(2):
            b0 = OA + 16*T + 8*u
            for i in range(8):
                A(f"v_mul_f32 v{b0+i}, v{b0+i}, v43")
            for i in range(4):
                A(f"v_cvt_pk_bf16_f32 v{120+i}, v{b0+2*i}, v{b0+2*i+1}")
            A("s_nop 1")
            A("v_permlane32_swap_b32 v120, v122")
            A("v_permlane32_swap_b32 v121, v123")
            A("s_nop 1")
            A(f"buffer_store_dwordx4 v[120:123], v16, s[36:39], 0 offen offset:{T*64 + u*32}")
            A("s_nop 1")
    g3.stamp(A)
    A.label("LA_end")
    A("s_endpgm")

def gen_oproj(A):
    A.raw(".globl oproj_kernel"); A.raw(".p2align 8"); A.raw(".type oproj_kernel,@function"); A.label("oproj_kernel")
    A("s_cmp_ge_u32 s2, 224")
    A("s_cbranch_scc1 LB_end")
    A("s_load_dwordx16 s[4:19], s[0:1], 0")
    A("v_lshrrev_b32 v1, 6, v0")
    A("s_nop 0")
    A("v_readfirstlane_b32 s40, v1")
    A("s_and_b32 s44, s2, 7")
    A("s_lshr_b32 s45, s2, 3")
    A("s_mov_b32 s41, 0x24924925")
    A("s_mul_hi_u32 s42, s45, s41")
    A("s_mul_i32 s43, s42, 7")
    A("s_sub_u32 s43, s45, s43")
    A("s_lshl_b32 s42, s42, 3")
    A("s_add_u32 s42, s42, s44")
    A("s_cmp_ge_u32 s42, 28")
    A("s_cbranch_scc1 LB_end")
    A("s_waitcnt lgkmcnt(0)")
    A("s_mov_b32 s20, s18"); A("s_mov_b32 s21, s19"); A(f"s_mov_b32 s22, {WS_BYTES}"); A("s_mov_b32 s23, 0x00020000")
    A("s_mov_b32 s24, s12"); A("s_mov_b32 s25, s13"); A(f"s_mov_b32 s26, {WO_BYTES}"); A("s_mov_b32 s27, 0x00020000")
    A("s_mov_b32 s28, s14"); A("s_mov_b32 s29, s15"); A(f"s_mov_b32 s30, {OUT_BYTES}"); A("s_mov_b32 s31, 0x00020000")
    A("v_and_b32 v1, 63, v0")
    A("v_and_b32 v2, 31, v1")
    A("v_lshrrev_b32 v3, 5, v1")
    A("v_bfe_u32 v4, v1, 4, 1")
    A("v_bfe_u32 v5, v1, 2, 2")
    A("v_and_b32 v6, 3, v1")
    A("s_lshl_b32 s44, s42, 5")
    A("v_add_u32 v7, s44, v2")
    A("v_lshlrev_b32 v8, 6, v7")
    A("s_lshl_b32 s44, s40, 4")
    A(f"s_add_u32 s44, s44, {LSE_OFF}")
    A("v_add_u32 v8, s44, v8")
    A("buffer_load_dwordx4 v[20:23], v8, s[20:23], 0 offen")
    A(f"buffer_load_dwordx4 v[24:27], v8, s[20:23], 0 offen offset:0")
    A.lines.pop()
    A(f"v_add_u32 v9, {896*64}, v8")
    A("buffer_load_dwordx4 v[24:27], v9, s[20:23], 0 offen")
    A("v_lshrrev_b32 v10, 3, v1")
    A("v_lshrrev_b32 v11, 4, v1")
    A("v_and_b32 v14, 7, v1")
    A("s_lshl_b32 s44, s42, 18")
    A("s_lshl_b32 s47, s40, 11")
    A("s_add_u32 s44, s44, s47")
    for par, r in ((0, 8), (1, 15)):
        A(f"v_add_u32 v16, {4*par}, v11")
        A("v_and_b32 v16, 7, v16")
        A("v_xor_b32 v16, v16, v14")
        A("v_lshlrev_b32 v16, 4, v16")
        A(f"v_lshl_add_u32 v{r}, v10, 13, v16")
        A(f"v_add_u32 v{r}, s44, v{r}")
    A("v_lshrrev_b32 v10, 1, v2")
    A("v_and_b32 v10, 7, v10")
    A("s_lshl_b32 s44, s40, 15")
    for ksl in range(4):
        A(f"v_add_u32 v11, {2*ksl}, v3")
        A("v_xor_b32 v11, v11, v10")
        A("v_lshlrev_b32 v11, 4, v11")
        A(f"v_lshl_add_u32 v{16+ksl}, v2, 7, v11")
        A(f"v_add_u32 v{16+ksl}, s44, v{16+ksl}")
    A("v_lshrrev_b32 v10, 3, v1")
    A("v_mul_u32_u24 v9, 896, v10")
    A("v_and_b32 v10, 7, v1")
    A("v_lshlrev_b32 v11, 2, v4")
    A("v_xor_b32 v10, v10, v11")
    A("v_lshl_add_u32 v9, v10, 4, v9")
    A("s_lshl_b32 s44, s43, 7")
    A("v_add_u32 v9, s44, v9")
    A("v_lshlrev_b32 v10, 3, v3")
    A("v_add_u32 v10, v10, v5")
    A("v_lshlrev_b32 v10, 7, v10")
    A("s_lshl_b32 s44, s40, 15")
    A("v_add_u32 v10, s44, v10")
    A("v_lshrrev_b32 v11, 1, v6")
    A("v_lshl_add_u32 v11, v4, 1, v11")
    A("v_lshl_add_u32 v10, v11, 4, v10")
    A("v_and_b32 v11, 1, v6")
    A("v_lshl_add_u32 v10, v11, 3, v10")
    A("v_lshrrev_b32 v11, 1, v5")
    for nti in range(2):
        A(f"v_xor_b32 v14, {nti}, v11")
        A(f"v_lshl_add_u32 v{12+nti}, v14, 6, v10")
    for i in range(32):
        A(f"v_mov_b32 v{32+i}, 0")
    A("s_mul_i32 s45, s40, 917504")
    A("s_lshl_b32 s46, s40, 15")
    def issue(chunk):
        slot = chunk & 1
        for q in range(8):
            A(f"s_add_u32 m0, s46, {slot*16384 + q*1024}")
            A(f"s_add_u32 s47, s45, {(chunk*64 + q*8)*896}")
            A("buffer_load_dwordx4 v9, s[24:27], s47 offen lds")
        for p in range(2):
            for q in range(4):
                A(f"s_add_u32 m0, s46, {slot*16384 + 8192 + p*4096 + q*1024}")
                A(f"s_mov_b32 s47, {p*O_BYTES + q*65536 + chunk*128}")
                A(f"buffer_load_dwordx4 v{8 if q%2==0 else 15}, s[20:23], s47 offen lds")
    issue(0)
    A("s_waitcnt vmcnt(16)")
    for h in range(4):
        A(f"v_max_f32 v28, v{20+h}, v{24+h}")
        A(f"v_sub_f32 v{20+h}, v{20+h}, v28")
        A(f"v_sub_f32 v{24+h}, v{24+h}, v28")
        A(f"v_exp_f32 v{20+h}, v{20+h}")
        A(f"v_exp_f32 v{24+h}, v{24+h}")
        A("s_nop 0")
        A(f"v_add_f32 v28, v{20+h}, v{24+h}")
        A("v_rcp_f32 v28, v28")
        A("s_nop 0")
        A(f"v_mul_f32 v{20+h}, v{20+h}, v28")
        A(f"v_mul_f32 v{24+h}, v{24+h}, v28")
    for c in range(16):
        if c + 1 < 16:
            issue(c+1)
            A("s_waitcnt vmcnt(16)")
        else:
            A("s_waitcnt vmcnt(0)")
        slot = c & 1
        for ksl in range(4):
            for nti in range(2):
                for sh in range(2):
                    A(f"ds_read_b64_tr_b16 a[{8*ksl+4*nti+2*sh}:{8*ksl+4*nti+2*sh+1}], v{12+nti} offset:{slot*16384 + ksl*2048 + sh*512}")
            for p in range(2):
                r = 128+16*p+4*ksl
                A(f"ds_read_b128 v[{r}:{r+3}], v{16+ksl} offset:{slot*16384 + 8192 + p*4096}")
        for ksl in range(4):
            A(f"s_waitcnt lgkmcnt({min(15,18-6*ksl)})")
            for p in range(2):
                for nti in range(2):
                    acc = 64+32*p+16*nti
                    cc = "0" if (c & 3) == 0 and ksl == 0 else f"v[{acc}:{acc+15}]"
                    r = 128+16*p+4*ksl
                    A(f"v_mfma_f32_32x32x16_bf16 v[{acc}:{acc+15}], a[{8*ksl+4*nti}:{8*ksl+4*nti+3}], v[{r}:{r+3}], {cc}")
        if (c & 3) == 3:
            h = c >> 2
            A.nop(20)
            for i in range(32):
                A(f"v_fma_f32 v{32+i}, v{64+i}, v{20+h}, v{32+i}")
                A(f"v_fma_f32 v{32+i}, v{96+i}, v{24+h}, v{32+i}")
    A("v_lshlrev_b32 v16, 4, v1")
    A("v_add_u32 v17, s46, v16")
    for j in range(8):
        A(f"ds_write_b128 v17, v[{32+4*j}:{35+4*j}] offset:{j*1024}")
    A("s_waitcnt lgkmcnt(0)")
    A("s_barrier")
    A("s_cmp_lg_u32 s40, 0")
    A("s_cbranch_scc1 LB_end")
    for w in range(1, 4):
        A(f"v_add_u32 v18, {w*32768}, v16")
        for j in range(8):
            A(f"ds_read_b128 v[{128+4*j}:{131+4*j}], v18 offset:{j*1024}")
        A("s_waitcnt lgkmcnt(0)")
        for i in range(32):
            A(f"v_add_f32 v{32+i}, v{32+i}, v{128+i}")
    A("v_mul_u32_u24 v16, 896, v7")
    A("s_lshl_b32 s44, s43, 7")
    A("v_add_u32 v16, s44, v16")
    A("v_lshl_add_u32 v16, v3, 4, v16")
    for nti in range(2):
        for u in range(2):
            b0 = 32 + 16*nti + 8*u
            for i in range(4):
                A(f"v_cvt_pk_bf16_f32 v{120+i}, v{b0+2*i}, v{b0+2*i+1}")
            A("s_nop 1")
            A("v_permlane32_swap_b32 v120, v122")
            A("v_permlane32_swap_b32 v121, v123")
            A("s_nop 1")
            A(f"buffer_store_dwordx4 v[120:123], v16, s[28:31], 0 offen offset:{nti*64 + u*32}")
            A("s_nop 1")
    A.label("LB_end")
    A("s_endpgm")

def gen_file():
    A = Asm()
    A.raw("; @launch kernel=attn_kernel grid=(256,1,1) block=(256,1,1) lds=163840")
    A.raw("; @launch kernel=oproj_kernel grid=(224,1,1) block=(256,1,1) lds=131072")
    A.raw('.amdgcn_target "amdgcn-amd-amdhsa--gfx950"')
    A.raw(".text")
    gen_attn(A)
    gen_oproj(A)
    A.raw('.section .rodata,"a"')
    A.raw(".p2align 6")
    kd(A, "attn_kernel", 512, 256)
    A.raw(".p2align 6")
    kd(A, "oproj_kernel", 288, 256)
    return A.text()

if __name__ == "__main__":
    if len(sys.argv) > 2: g3.STAMP = True
    open(sys.argv[1], "w").write(gen_file())
```

```python
import sys
import g3
from g3 import Asm, f32hex, interleave, kd, CSCALE, X_BYTES, WQ_BYTES, WO_BYTES, O_BYTES, OUT_BYTES
import os
NPF = int(os.environ.get('NPF','3'))
DEP = int(os.environ.get('DEP','4'))
SA, SB, PK, OA = 96, 112, 48, 128
QF, KF, VF = 0, 64, 128
QA = 128
LSE_OFF = 2*O_BYTES
WS_BYTES = 2*O_BYTES + 2*896*16*4

def gen_attn(A):
    A.raw(".globl attn_kernel"); A.raw(".p2align 8"); A.raw(".type attn_kernel,@function"); A.label("attn_kernel")
    A("s_cmp_ge_u32 s2, 256")
    A("s_cbranch_scc1 LA_end")
    A("s_load_dwordx16 s[4:19], s[0:1], 0")
    A("v_lshrrev_b32 v1, 6, v0")
    A("s_nop 0")
    A("v_readfirstlane_b32 s40, v1")
    A("s_and_b32 s46, s2, 7")
    A("s_lshr_b32 s45, s2, 3")
    A("s_lshr_b32 s44, s45, 2")
    A("s_lshr_b32 s49, s45, 1")
    A("s_and_b32 s49, s49, 1")
    A("s_and_b32 s42, s45, 1")
    A("s_lshl_b32 s48, s44, 1")
    A("s_add_u32 s48, s48, s49")
    A("s_mul_i32 s50, s46, 112")
    A("s_lshl_b32 s51, s46, 3")
    A("s_add_u32 s51, s51, s44")
    A("s_waitcnt lgkmcnt(0)")
    A("s_mov_b32 s20, s4"); A("s_mov_b32 s21, s5"); A(f"s_mov_b32 s22, {X_BYTES}"); A("s_mov_b32 s23, 0x00020000")
    A("s_lshl_b32 s52, s51, 19")
    A("s_add_u32 s24, s6, s52"); A("s_addc_u32 s25, s7, 0"); A("s_mov_b32 s26, 524288"); A("s_mov_b32 s27, 0x00020000")
    A("s_add_u32 s28, s8, s52"); A("s_addc_u32 s29, s9, 0"); A("s_mov_b32 s30, 524288"); A("s_mov_b32 s31, 0x00020000")
    A("s_mov_b32 s32, s10"); A("s_mov_b32 s33, s11"); A(f"s_mov_b32 s34, {WQ_BYTES}"); A("s_mov_b32 s35, 0x00020000")
    A("s_mov_b32 s36, s18"); A("s_mov_b32 s37, s19"); A(f"s_mov_b32 s38, {WS_BYTES}"); A("s_mov_b32 s39, 0x00020000")
    A("s_mov_b32 s92, s16"); A("s_mov_b32 s93, s17"); A("s_mov_b32 s94, 256"); A("s_mov_b32 s95, 0x00020000")
    A("s_cmp_eq_u32 s2, 0"); A("s_cselect_b32 s94, s94, 0"); A("s_cmp_eq_u32 s40, 0"); A("s_cselect_b32 s94, s94, 0")
    g3.stamp(A)
    A("v_and_b32 v1, 63, v0")
    A("v_and_b32 v2, 31, v1")
    A("v_lshrrev_b32 v3, 5, v1")
    A("v_bfe_u32 v4, v1, 4, 1")
    A("v_bfe_u32 v5, v1, 2, 2")
    A("v_and_b32 v6, 3, v1")
    A("s_lshl_b32 s52, s40, 3")
    for q in range(4):
        A(f"v_add_u32 v9, {2*q}, v3")
        A("v_add_u32 v9, s52, v9")
        A("v_and_b32 v38, 15, v9")
        A("v_xor_b32 v38, v38, v2")
        A("v_lshlrev_b32 v38, 4, v38")
        A(f"v_lshl_add_u32 v{28+q}, v9, 9, v38")
    for par in range(2):
        A("v_lshlrev_b32 v9, 2, v3")
        A(f"v_add_u32 v9, {8*par}, v9")
        A("v_xor_b32 v9, v9, v2")
        A("v_lshlrev_b32 v9, 4, v9")
        A(f"v_lshl_add_u32 v{36+par}, v3, 9, v9")
    A("s_lshl_b32 s56, s40, 12")
    A("s_lshl_b32 s57, s42, 18")
    A("s_add_u32 s59, s57, s56")
    A("s_lshl_b32 s62, s44, 1")
    A("s_add_u32 s62, s62, s42")
    A("s_mov_b32 s63, s62")
    A("s_mov_b32 s74, s62")
    A("v_lshlrev_b32 v44, 7, v1")
    A("s_mov_b32 s66, 524288"); A("s_mov_b32 s67, 0x00020000")
    NB = [0]
    def dma_k_groups(n):
        G = []
        for q in range(4):
            pre = ["s_and_b32 s60, s62, 15", "s_lshl_b32 s60, s60, 14", "s_add_u32 s60, s60, s57", "s_add_u32 s62, s62, 1"] if q == 0 else []
            G.append(pre + [f"s_add_u32 m0, s56, {(n&3)*16384 + q*1024}", "s_nop 0",
                      ("vm", f"buffer_load_dwordx4 v{28+q}, s[24:27], s60 offen lds", f"K{n}")])
        return G
    def dma_v_groups(n):
        G = []
        for q in range(4):
            pre = ["s_and_b32 s61, s63, 15", "s_lshl_b32 s61, s61, 14", "s_add_u32 s61, s61, s59", "s_add_u32 s63, s63, 1"] if q == 0 else []
            G.append(pre + [f"s_add_u32 m0, s56, {65536 + (n&3)*16384 + q*1024}", f"s_add_u32 s58, s61, {q*1024}",
                      ("vm", f"buffer_load_dwordx4 v{36+(q&1)}, s[28:31], s58 offen lds", f"V{n}")])
        return G
    def emit(L):
        for it in L:
            if isinstance(it, tuple):
                if it[0] == "wl": A.wait_lg(it[1])
                elif it[0] == "lg": A.lg(it[1], it[2])
                elif it[0] == "vm": A.vm(it[1], it[2])
            else:
                A(it)
    for par in range(2):
        A("v_lshlrev_b32 v9, 2, v3")
        A(f"v_add_u32 v9, {8*par}, v9")
        A("v_xor_b32 v9, v9, v2")
        A("v_lshlrev_b32 v9, 4, v9")
        A("v_lshl_add_u32 v9, v3, 13, v9")
        A("s_lshl_b32 s52, s48, 9")
        A(f"v_add_u32 v{10+par}, s52, v9")
    def wq_issue(c):
        slot = c % 3
        for q in range(4):
            A(f"s_add_u32 m0, s56, {114688 + slot*16384 + q*1024}")
            A("s_lshl_b32 s53, s40, 16")
            A(f"s_add_u32 s53, s53, {(c*32 + 2*q)*8192}")
            A.vm(f"buffer_load_dwordx4 v{10+(q&1)}, s[32:35], s53 offen lds", f"W{c}")
    A("s_lshl_b32 s52, s40, 5")
    A("s_add_u32 s52, s52, s50")
    A("v_add_u32 v7, s52, v2")
    A("v_mul_u32_u24 v8, 896, v7")
    A("v_lshl_add_u32 v8, v3, 4, v8")
    def x_groups(c):
        return [[("vm", f"buffer_load_dwordx4 v[{128+4*ks}:{131+4*ks}], v8, s[20:23], 0 offen offset:{ks*32}", f"X{c}")] for ks in (2*c, 2*c+1)]
    wq_issue(0)
    for g in x_groups(0): emit(g)
    wq_issue(1)
    for g in x_groups(1): emit(g)
    wq_issue(2)
    for g in x_groups(2): emit(g)
    A("v_lshlrev_b32 v9, 3, v3")
    A("v_add_u32 v9, v9, v5")
    A("v_lshlrev_b32 v9, 9, v9")
    A("v_add_u32 v9, 114688, v9")
    A("v_lshrrev_b32 v16, 1, v6")
    A("v_lshl_add_u32 v16, v4, 1, v16")
    A("v_lshl_add_u32 v9, v16, 4, v9")
    A("v_and_b32 v16, 1, v6")
    A("v_lshl_add_u32 v9, v16, 3, v9")
    for T in range(4):
        A(f"v_xor_b32 v16, {T}, v5")
        A(f"v_lshl_add_u32 v{12+T}, v16, 6, v9")
        A(f"v_add_u32 v{20+T}, 65536, v{12+T}")
    def q_reads(c):
        slot = c % 3; fb = 64*(c & 1)
        G = []
        for ksl in range(2):
            for T in range(8):
                o = slot*16384 + ksl*8192 + (T>>2)*256
                vb = 12+(T&3)
                G.append([("lg", f"ds_read_b64_tr_b16 a[{fb+32*ksl+4*T}:{fb+32*ksl+4*T+1}], v{vb} offset:{o}", f"q{c}"),
                          ("lg", f"ds_read_b64_tr_b16 a[{fb+32*ksl+4*T+2}:{fb+32*ksl+4*T+3}], v{vb} offset:{o+2048}", f"q{c}")])
        return G
    def wq_groups(c):
        slot = c % 3
        return [[f"s_add_u32 m0, s56, {114688 + slot*16384 + q*1024}", "s_lshl_b32 s53, s40, 16",
                 f"s_add_u32 s53, s53, {(c*32 + 2*q)*8192}",
                 ("vm", f"buffer_load_dwordx4 v{10+(q&1)}, s[32:35], s53 offen lds", f"W{c}")] for q in range(4)]
    g3.stamp(A)
    def pf_groups():
        G = []
        for t in range(NPF):
            G.append(["s_lshl_b32 s70, s49, 2", "s_add_u32 s70, s70, s40", f"s_mul_i32 s70, s70, {NPF}", f"s_add_u32 s70, s70, {t}",
                      f"s_cmp_ge_u32 s70, {4*NPF}", "s_cselect_b32 s71, 1, 0", "s_cselect_b32 s64, s28, s24", "s_cselect_b32 s65, s29, s25",
                      f"s_mul_i32 s72, s71, {4*NPF}", "s_sub_u32 s72, s70, s72",
                      "s_lshr_b32 s73, s72, 1", "s_add_u32 s73, s73, 4", "s_sub_u32 s73, s73, s71", "s_add_u32 s73, s73, s74",
                      "s_and_b32 s73, s73, 15", "s_lshl_b32 s73, s73, 14", "s_and_b32 s72, s72, 1", "s_lshl_b32 s72, s72, 13",
                      "s_add_u32 s73, s73, s72", "s_add_u32 s73, s73, s57",
                      ("vm", "buffer_load_dword v45, v44, s[64:67], s73 offen", "PF")])
        return G
    A.wait_vm("W0")
    A("s_barrier")
    g3.stamp(A)
    for g in q_reads(0): emit(g)
    for c in range(14):
        fb = 64*(c & 1)
        f = []
        A.wait_lg(f"q{c}")
        if c+1 < 14:
            A.wait_vm(f"W{c+1}")
            A("s_barrier")
            if c+3 < 14: f += wq_groups(c+3)
        if c+3 < 14: f += x_groups(c+3)
        if c < 2*DEP-1: f += (dma_k_groups(c//2) if c % 2 == 0 else dma_v_groups(c//2))
        A.wait_vm(f"X{c}")
        if c in (3, 8): g3.stamp(A)
        if c+1 < 14: f += q_reads(c+1)
        mf = []
        for ksl in range(2):
            ks = 2*c + ksl
            for T in range(8):
                cc = "0" if ks == 0 else f"a[{QA+16*T}:{QA+16*T+15}]"
                mf.append([f"v_mfma_f32_32x32x16_bf16 a[{QA+16*T}:{QA+16*T+15}], a[{fb+32*ksl+4*T}:{fb+32*ksl+4*T+3}], v[{128+4*ks}:{131+4*ks}], {cc}"])
        for it in interleave(mf, f): emit(it)
    g3.stamp(A)
    A("s_barrier")
    A.nop(16)
    for T in range(8):
        for u in range(2):
            b0 = QA + 16*T + 8*u
            for i in range(8):
                A(f"v_accvgpr_read_b32 v{56+i}, a{b0+i}")
            A("s_nop 0")
            for i in range(4):
                A(f"v_cvt_pk_bf16_f32 v{120+i}, v{56+2*i}, v{57+2*i}")
            A("s_nop 1")
            A("v_permlane32_swap_b32 v120, v122")
            A("v_permlane32_swap_b32 v121, v123")
            A("s_nop 1")
            for i in range(4):
                A(f"v_accvgpr_write_b32 a{QF+4*(2*T+u)+i}, v{120+i}")
    A("v_lshlrev_b32 v9, 9, v2")
    A("v_and_b32 v24, 15, v2")
    for k0 in range(8):
        A(f"v_add_u32 v25, {2*k0}, v3")
        A("v_xor_b32 v25, v25, v24")
        A(f"v_lshl_add_u32 v{16+k0}, v25, 4, v9")
    A("v_lshlrev_b32 v9, 2, v3")
    A("v_add_u32 v9, v9, v5")
    A("v_lshlrev_b32 v9, 9, v9")
    A("v_add_u32 v9, 65536, v9")
    A("v_lshrrev_b32 v38, 1, v6")
    A("v_lshl_add_u32 v38, v4, 1, v38")
    A("v_lshl_add_u32 v9, v38, 4, v9")
    A("v_and_b32 v38, 1, v6")
    A("v_lshl_add_u32 v9, v38, 3, v9")
    for T0 in range(4):
        A(f"v_xor_b32 v38, {T0}, v5")
        A(f"v_lshl_add_u32 v{24+T0}, v38, 6, v9")
    A("v_mov_b32 v40, 0xff800000")
    A("v_mov_b32 v41, 0")
    for i in range(128):
        A(f"v_mov_b32 v{OA+i}, 0")
    A(f"s_mov_b32 s55, {f32hex(CSCALE)}")
    A("v_mov_b32 v39, 8.0")
    A.wait_vm("K0")
    A("s_barrier")
    def k_read_groups(n):
        return [[("lg", f"ds_read_b128 a[{KF+4*kk}:{KF+4*kk+3}], v{16+(kk&7)} offset:{(n&3)*16384 + (kk>>3)*256}", f"k{kk}")] for kk in range(16)]
    def qk_mfmas(S):
        L = []
        for kk in range(16):
            c = "0" if kk == 0 else f"v[{S}:{S+15}]"
            L.append([("wl", f"k{kk}"), f"v_mfma_f32_32x32x16_bf16 v[{S}:{S+15}], a[{KF+4*kk}:{KF+4*kk+3}], a[{QF+4*kk}:{QF+4*kk+3}], {c}"])
        return L
    def pv_mfmas():
        return [f"v_mfma_f32_32x32x16_bf16 v[{OA+16*T}:{OA+16*T+15}], a[{VF+32*t+4*T}:{VF+32*t+4*T+3}], v[{PK+4*t}:{PK+4*t+3}], v[{OA+16*T}:{OA+16*T+15}]" for t in range(2) for T in range(8)]
    for g in k_read_groups(0): emit(g)
    for g in qk_mfmas(SA): emit(g)
    def body(n):
        first = n == 0; last = n == 15
        S = SA if n % 2 == 0 else SB
        Sn = SB if n % 2 == 0 else SA
        if not last: A.wait_vm(f"K{n+1}")
        A.wait_vm(f"V{n}")
        A("s_barrier")
        f1 = []
        if n+DEP < 16: f1 += dma_k_groups(n+DEP)
        if not last: f1 += k_read_groups(n+1)
        if n+DEP-1 < 16: f1 += dma_v_groups(n+DEP-1)
        mx = [f"v_max3_f32 v42, v{S}, v{S+1}, v{S+2}"]
        for i in range(3, 15, 2):
            mx.append(f"v_max3_f32 v42, v42, v{S+i}, v{S+i+1}")
        mx += [f"v_max_f32 v42, v42, v{S+15}", "v_mov_b32 v43, v42", "s_nop 1", "v_permlane32_swap_b32 v42, v43",
               "v_max_f32 v42, v42, v43", "v_mul_f32 v42, s55, v42", "v_sub_f32 v43, v42, v40", "v_cmp_gt_f32 vcc, v43, v39"]
        if len(f1) < 12: A.nop(16)
        f1 += [[m] for m in mx]
        if first:
            for g in f1: emit(g)
        else:
            A.wait_lg("v")
            for it in interleave([[m] for m in pv_mfmas()], f1): emit(it)
        A("s_nop 4")
        A(f"s_cbranch_vccz LA_nr{n}")
        A.nop(16)
        A("v_max_f32 v42, v40, v42")
        A("v_sub_f32 v43, v40, v42")
        A("v_exp_f32 v43, v43")
        A("v_mov_b32 v40, v42")
        A("s_nop 0")
        A("v_mul_f32 v41, v41, v43")
        for i in range(128):
            A(f"v_mul_f32 v{OA+i}, v{OA+i}, v43")
        A.label(f"LA_nr{n}")
        fill = [f"v_fma_f32 v{S+i}, v{S+i}, s55, -v40" for i in range(16)]
        vr = []
        for t in range(2):
            for T in range(8):
                for sh in range(2):
                    vr.append(("lg", f"ds_read_b64_tr_b16 a[{VF+32*t+4*T+2*sh}:{VF+32*t+4*T+2*sh+1}], v{24+(T&3)} offset:{(n&3)*16384 + t*8192 + sh*4096 + (T>>2)*256}", "v"))
        for i in range(16):
            fill += [f"v_exp_f32 v{S+i}, v{S+i}", vr[2*i], vr[2*i+1]]
        fill += [f"v_add_f32 v41, v41, v{S+i}" for i in range(16)]
        fill += [f"v_cvt_pk_bf16_f32 v{PK+i}, v{S+2*i}, v{S+2*i+1}" for i in range(8)]
        if not last:
            for it in interleave(qk_mfmas(Sn), fill):
                if isinstance(it, list): emit(it)
                else: emit([it])
        else:
            emit(fill)
    g3.stamp(A)
    for n in range(4): body(n)
    g3.stamp(A)
    A("s_mov_b32 s43, 0")
    A.label("LA_loop")
    for n in range(4, 8): body(n)
    A("s_add_u32 s43, s43, 1")
    A("s_cmp_lt_u32 s43, 2")
    A("s_cbranch_scc1 LA_loop")
    keep = A.lines
    A.lines = []
    for n in range(8, 12): body(n)
    A.lines = keep
    NB[0] = 8
    g3.stamp(A)
    for n in range(12, 16): body(n)
    A("s_nop 1")
    A.wait_lg("v")
    for m in pv_mfmas(): A(m)
    g3.stamp(A)
    A("v_mov_b32 v43, v41")
    A("s_nop 1")
    A("v_permlane32_swap_b32 v41, v43")
    A("v_add_f32 v41, v41, v43")
    A("v_log_f32 v44, v41")
    A("v_rcp_f32 v43, v41")
    A("v_add_f32 v44, v44, v40")
    A("v_lshlrev_b32 v16, 13, v7")
    A("s_lshl_b32 s53, s48, 9")
    A(f"s_mul_i32 s54, s42, {O_BYTES}")
    A("s_add_u32 s53, s53, s54")
    A("v_add_u32 v16, s53, v16")
    A("v_lshl_add_u32 v16, v3, 4, v16")
    A("s_mul_i32 s54, s42, 896")
    A("v_add_u32 v18, s54, v7")
    A("v_lshlrev_b32 v18, 4, v18")
    A("v_add_u32 v18, s48, v18")
    A("v_lshlrev_b32 v18, 2, v18")
    A(f"v_add_u32 v18, {LSE_OFF}, v18")
    A("s_lshl_b32 s53, s40, 5")
    A("v_add_u32 v17, s53, v2")
    A("v_cmp_gt_u32 vcc, 112, v17")
    A("v_mov_b32 v17, 0x7fff0000")
    A("s_nop 1")
    A("v_cndmask_b32 v16, v17, v16, vcc")
    A("v_cndmask_b32 v18, v17, v18, vcc")
    A("buffer_store_dword v44, v18, s[36:39], 0 offen")
    A.nop(16)
    for T in range(8):
        for u in range(2):
            b0 = OA + 16*T + 8*u
            for i in range(8):
                A(f"v_mul_f32 v{b0+i}, v{b0+i}, v43")
            for i in range(4):
                A(f"v_cvt_pk_bf16_f32 v{120+i}, v{b0+2*i}, v{b0+2*i+1}")
            A("s_nop 1")
            A("v_permlane32_swap_b32 v120, v122")
            A("v_permlane32_swap_b32 v121, v123")
            A("s_nop 1")
            A(f"buffer_store_dwordx4 v[120:123], v16, s[36:39], 0 offen offset:{T*64 + u*32}")
            A("s_nop 1")
    g3.stamp(A)
    A.label("LA_end")
    A("s_endpgm")

def gen_oproj(A):
    A.raw(".globl oproj_kernel"); A.raw(".p2align 8"); A.raw(".type oproj_kernel,@function"); A.label("oproj_kernel")
    A("s_cmp_ge_u32 s2, 224")
    A("s_cbranch_scc1 LB_end")
    A("s_load_dwordx16 s[4:19], s[0:1], 0")
    A("v_lshrrev_b32 v1, 6, v0")
    A("s_nop 0")
    A("v_readfirstlane_b32 s40, v1")
    A("s_and_b32 s44, s2, 7")
    A("s_lshr_b32 s45, s2, 3")
    A("s_mov_b32 s41, 0x24924925")
    A("s_mul_hi_u32 s42, s45, s41")
    A("s_mul_i32 s43, s42, 7")
    A("s_sub_u32 s43, s45, s43")
    A("s_lshl_b32 s42, s42, 3")
    A("s_add_u32 s42, s42, s44")
    A("s_cmp_ge_u32 s42, 28")
    A("s_cbranch_scc1 LB_end")
    A("s_waitcnt lgkmcnt(0)")
    A("s_mov_b32 s20, s18"); A("s_mov_b32 s21, s19"); A(f"s_mov_b32 s22, {WS_BYTES}"); A("s_mov_b32 s23, 0x00020000")
    A("s_mov_b32 s24, s12"); A("s_mov_b32 s25, s13"); A(f"s_mov_b32 s26, {WO_BYTES}"); A("s_mov_b32 s27, 0x00020000")
    A("s_mov_b32 s28, s14"); A("s_mov_b32 s29, s15"); A(f"s_mov_b32 s30, {OUT_BYTES}"); A("s_mov_b32 s31, 0x00020000")
    A("s_mov_b32 s92, s16"); A("s_mov_b32 s93, s17"); A("s_mov_b32 s94, 256"); A("s_mov_b32 s95, 0x00020000")
    A("s_cmp_eq_u32 s2, 0"); A("s_cselect_b32 s94, s94, 0"); A("s_cmp_eq_u32 s40, 0"); A("s_cselect_b32 s94, s94, 0")
    g3.stamp(A)
    A("v_and_b32 v1, 63, v0")
    A("v_and_b32 v2, 31, v1")
    A("v_lshrrev_b32 v3, 5, v1")
    A("v_bfe_u32 v4, v1, 4, 1")
    A("v_bfe_u32 v5, v1, 2, 2")
    A("v_and_b32 v6, 3, v1")
    A("s_lshl_b32 s44, s42, 5")
    A("v_add_u32 v7, s44, v2")
    A("v_lshlrev_b32 v8, 6, v7")
    A("s_lshl_b32 s44, s40, 4")
    A(f"s_add_u32 s44, s44, {LSE_OFF}")
    A("v_add_u32 v8, s44, v8")
    A("buffer_load_dwordx4 v[20:23], v8, s[20:23], 0 offen")
    A(f"buffer_load_dwordx4 v[24:27], v8, s[20:23], 0 offen offset:0")
    A.lines.pop()
    A(f"v_add_u32 v9, {896*64}, v8")
    A("buffer_load_dwordx4 v[24:27], v9, s[20:23], 0 offen")
    A("v_lshrrev_b32 v10, 3, v1")
    A("v_lshrrev_b32 v11, 4, v1")
    A("v_and_b32 v14, 7, v1")
    A("s_lshl_b32 s44, s42, 18")
    A("s_lshl_b32 s47, s40, 11")
    A("s_add_u32 s44, s44, s47")
    for par, r in ((0, 8), (1, 15)):
        A(f"v_add_u32 v16, {4*par}, v11")
        A("v_and_b32 v16, 7, v16")
        A("v_xor_b32 v16, v16, v14")
        A("v_lshlrev_b32 v16, 4, v16")
        A(f"v_lshl_add_u32 v{r}, v10, 13, v16")
        A(f"v_add_u32 v{r}, s44, v{r}")
    A("v_lshrrev_b32 v10, 1, v2")
    A("v_and_b32 v10, 7, v10")
    A("s_lshl_b32 s44, s40, 15")
    for ksl in range(4):
        A(f"v_add_u32 v11, {2*ksl}, v3")
        A("v_xor_b32 v11, v11, v10")
        A("v_lshlrev_b32 v11, 4, v11")
        A(f"v_lshl_add_u32 v{16+ksl}, v2, 7, v11")
        A(f"v_add_u32 v{16+ksl}, s44, v{16+ksl}")
    A("v_lshrrev_b32 v10, 3, v1")
    A("v_mul_u32_u24 v9, 896, v10")
    A("v_and_b32 v10, 7, v1")
    A("v_lshlrev_b32 v11, 2, v4")
    A("v_xor_b32 v10, v10, v11")
    A("v_lshl_add_u32 v9, v10, 4, v9")
    A("s_lshl_b32 s44, s43, 7")
    A("v_add_u32 v9, s44, v9")
    A("v_lshlrev_b32 v10, 3, v3")
    A("v_add_u32 v10, v10, v5")
    A("v_lshlrev_b32 v10, 7, v10")
    A("s_lshl_b32 s44, s40, 15")
    A("v_add_u32 v10, s44, v10")
    A("v_lshrrev_b32 v11, 1, v6")
    A("v_lshl_add_u32 v11, v4, 1, v11")
    A("v_lshl_add_u32 v10, v11, 4, v10")
    A("v_and_b32 v11, 1, v6")
    A("v_lshl_add_u32 v10, v11, 3, v10")
    A("v_lshrrev_b32 v11, 1, v5")
    for nti in range(2):
        A(f"v_xor_b32 v14, {nti}, v11")
        A(f"v_lshl_add_u32 v{12+nti}, v14, 6, v10")
    for i in range(32):
        A(f"v_mov_b32 v{32+i}, 0")
    A("s_mul_i32 s45, s40, 917504")
    A("s_lshl_b32 s46, s40, 15")
    def issue(chunk):
        slot = chunk & 1
        for q in range(8):
            A(f"s_add_u32 m0, s46, {slot*16384 + q*1024}")
            A(f"s_add_u32 s47, s45, {(chunk*64 + q*8)*896}")
            A("buffer_load_dwordx4 v9, s[24:27], s47 offen lds")
        for p in range(2):
            for q in range(4):
                A(f"s_add_u32 m0, s46, {slot*16384 + 8192 + p*4096 + q*1024}")
                A(f"s_mov_b32 s47, {p*O_BYTES + q*65536 + chunk*128}")
                A(f"buffer_load_dwordx4 v{8 if q%2==0 else 15}, s[20:23], s47 offen lds")
    issue(0)
    A("s_waitcnt vmcnt(16)")
    for h in range(4):
        A(f"v_max_f32 v28, v{20+h}, v{24+h}")
        A(f"v_sub_f32 v{20+h}, v{20+h}, v28")
        A(f"v_sub_f32 v{24+h}, v{24+h}, v28")
        A(f"v_exp_f32 v{20+h}, v{20+h}")
        A(f"v_exp_f32 v{24+h}, v{24+h}")
        A("s_nop 0")
        A(f"v_add_f32 v28, v{20+h}, v{24+h}")
        A("v_rcp_f32 v28, v28")
        A("s_nop 0")
        A(f"v_mul_f32 v{20+h}, v{20+h}, v28")
        A(f"v_mul_f32 v{24+h}, v{24+h}, v28")
    for c in range(16):
        if c in (1, 8): g3.stamp(A)
        if c + 1 < 16:
            issue(c+1)
            A("s_waitcnt vmcnt(16)")
        else:
            A("s_waitcnt vmcnt(0)")
        slot = c & 1
        for ksl in range(4):
            for nti in range(2):
                for sh in range(2):
                    A(f"ds_read_b64_tr_b16 a[{8*ksl+4*nti+2*sh}:{8*ksl+4*nti+2*sh+1}], v{12+nti} offset:{slot*16384 + ksl*2048 + sh*512}")
            for p in range(2):
                r = 128+16*p+4*ksl
                A(f"ds_read_b128 v[{r}:{r+3}], v{16+ksl} offset:{slot*16384 + 8192 + p*4096}")
        for ksl in range(4):
            A(f"s_waitcnt lgkmcnt({min(15,18-6*ksl)})")
            for p in range(2):
                for nti in range(2):
                    acc = 64+32*p+16*nti
                    cc = "0" if (c & 3) == 0 and ksl == 0 else f"v[{acc}:{acc+15}]"
                    r = 128+16*p+4*ksl
                    A(f"v_mfma_f32_32x32x16_bf16 v[{acc}:{acc+15}], a[{8*ksl+4*nti}:{8*ksl+4*nti+3}], v[{r}:{r+3}], {cc}")
        if (c & 3) == 3:
            h = c >> 2
            A.nop(20)
            for i in range(32):
                A(f"v_fma_f32 v{32+i}, v{64+i}, v{20+h}, v{32+i}")
                A(f"v_fma_f32 v{32+i}, v{96+i}, v{24+h}, v{32+i}")
    g3.stamp(A)
    A("v_lshlrev_b32 v16, 4, v1")
    A("v_add_u32 v17, s46, v16")
    for j in range(8):
        A(f"ds_write_b128 v17, v[{32+4*j}:{35+4*j}] offset:{j*1024}")
    A("s_waitcnt lgkmcnt(0)")
    A("s_barrier")
    A("s_cmp_lg_u32 s40, 0")
    A("s_cbranch_scc1 LB_end")
    for w in range(1, 4):
        A(f"v_add_u32 v18, {w*32768}, v16")
        for j in range(8):
            A(f"ds_read_b128 v[{128+4*j}:{131+4*j}], v18 offset:{j*1024}")
        A("s_waitcnt lgkmcnt(0)")
        for i in range(32):
            A(f"v_add_f32 v{32+i}, v{32+i}, v{128+i}")
    A("v_mul_u32_u24 v16, 896, v7")
    A("s_lshl_b32 s44, s43, 7")
    A("v_add_u32 v16, s44, v16")
    A("v_lshl_add_u32 v16, v3, 4, v16")
    for nti in range(2):
        for u in range(2):
            b0 = 32 + 16*nti + 8*u
            for i in range(4):
                A(f"v_cvt_pk_bf16_f32 v{120+i}, v{b0+2*i}, v{b0+2*i+1}")
            A("s_nop 1")
            A("v_permlane32_swap_b32 v120, v122")
            A("v_permlane32_swap_b32 v121, v123")
            A("s_nop 1")
            A(f"buffer_store_dwordx4 v[120:123], v16, s[28:31], 0 offen offset:{nti*64 + u*32}")
            A("s_nop 1")
    g3.stamp(A)
    A.label("LB_end")
    A("s_endpgm")

def gen_file():
    A = Asm()
    A.raw("; @launch kernel=attn_kernel grid=(256,1,1) block=(256,1,1) lds=163840")
    A.raw("; @launch kernel=oproj_kernel grid=(224,1,1) block=(256,1,1) lds=131072")
    A.raw('.amdgcn_target "amdgcn-amd-amdhsa--gfx950"')
    A.raw(".text")
    gen_attn(A)
    gen_oproj(A)
    A.raw('.section .rodata,"a"')
    A.raw(".p2align 6")
    kd(A, "attn_kernel", 512, 256)
    A.raw(".p2align 6")
    kd(A, "oproj_kernel", 288, 256)
    return A.text()

if __name__ == "__main__":
    if len(sys.argv) > 2: g3.STAMP = True
    open(sys.argv[1], "w").write(gen_file())
```
